```python
import torch

def _softmax(x, axis=-1):
    return torch.softmax(x, dim=axis)
def _gelu(x):
    return torch.nn.functional.gelu(x, approximate="tanh")
def _silu(x):
    return torch.nn.functional.silu(x)
def _sigmoid(x):
    return torch.sigmoid(x)
def _layernorm(x, axis=-1, eps=1e-5):
    m = x.mean(dim=axis, keepdim=True)
    v = x.var(dim=axis, keepdim=True, unbiased=False)
    return (x - m) / torch.sqrt(v + eps)
def _scatter_add(tgt, idx, src, axis=0):
    return tgt.clone().index_add_(axis, idx, src)
def _segment_sum(src, seg, n):
    out = torch.zeros((n,) + src.shape[1:], dtype=src.dtype)
    return out.index_add_(0, seg, src)
def _pad(x, pw):
    flat = tuple(v for pair in reversed(pw) for v in pair)
    return torch.nn.functional.pad(x, flat)

kernel_name = 'sequential_preLN__sliding_block_cached__mixer_channel_mlp__decode'

def setup_inputs():

    _w = (lambda a: (lambda t: t.to(torch.bfloat16) if t.is_floating_point() else t)(torch.as_tensor(a)))
    def _A_setup():
        B, Sq, D = 2, 1, 576
        Hq, Hkv, Sk, Dh = 32, 16, 32768, 128
        assert Hq % Hkv == 0, (Hq, Hkv)
        return {
            "x": _w((lambda *s: torch.randn(*s, dtype=torch.bfloat16) * 0.05)(B, Sq, D)),
            "k_cache": _w((lambda *s: torch.randn(*s, dtype=torch.bfloat16) * 3.2)(B, Hkv, Sk, Dh)),
            "v_cache": _w((lambda *s: torch.randn(*s, dtype=torch.bfloat16) * 0.4)(B, Hkv, Sk, Dh)),
            "wq": _w((lambda *s: torch.randn(*s, dtype=torch.bfloat16) * 3.2)(D, Hq * Dh) * (D ** -0.5)),
            "wo": _w((lambda *s: torch.randn(*s, dtype=torch.bfloat16) * 0.4)(Hq * Dh, D) * ((Hq * Dh) ** -0.5)),
        }
    _A_in = _A_setup()

    def _B_setup():
        B, S, D, F = 2, 1, 576, 4608
        return {
            "x": _w((lambda *s: torch.randn(*s, dtype=torch.bfloat16) * 0.05)(B, S, D)),
            "w1": _w((lambda *s: torch.randn(*s, dtype=torch.bfloat16) * 3.2)(D, F) * (D ** -0.5)),
            "b1": _w((lambda *s: torch.randn(*s, dtype=torch.bfloat16) * 3.2)(F)),
            "w2": _w((lambda *s: torch.randn(*s, dtype=torch.bfloat16) * 0.8)(F, D) * (F ** -0.5)),
            "b2": _w((lambda *s: torch.randn(*s, dtype=torch.bfloat16) * 1.6)(D)),
        }
    _B_in = _B_setup()

    return {
        "A_x": _A_in["x"],
        "A_k_cache": _A_in["k_cache"],
        "A_v_cache": _A_in["v_cache"],
        "A_wq": _A_in["wq"],
        "A_wo": _A_in["wo"],
        "B_x": _B_in["x"],
        "B_w1": _B_in["w1"],
        "B_b1": _B_in["b1"],
        "B_w2": _B_in["w2"],
        "B_b2": _B_in["b2"],
    }

def reference(A_x, A_k_cache, A_v_cache, A_wq, A_wo, B_x, B_w1, B_b1, B_w2, B_b2):
    def _A_ref(x, k_cache, v_cache, wq, wo):
        B, Sq, D = x.shape
        Hq, Dh = 32, 128
        Hkv, Sk = k_cache.shape[1], k_cache.shape[2]
        W = min(4096, max(256, Sk // 4))
        rep = Hq // Hkv
        q = (lambda x, *d: x.permute(*d))((x @ wq).reshape(B, Sq, Hq, Dh), 0, 2, 1, 3)
        k = (lambda x, n, axis: torch.repeat_interleave(x, n, dim=axis))(k_cache[:, :, Sk - W:, :], rep, axis=1)
        v = (lambda x, n, axis: torch.repeat_interleave(x, n, dim=axis))(v_cache[:, :, Sk - W:, :], rep, axis=1)
        scores = torch.einsum("bhqd,bhkd->bhqk", q, k) * (Dh ** -0.5)
        p = _softmax(scores, axis=-1)
        o = torch.einsum("bhqk,bhkd->bhqd", p, v)
        return (lambda x, *d: x.permute(*d))(o, 0, 2, 1, 3).reshape(B, Sq, Hq * Dh) @ wo

    def _B_ref(x, w1, b1, w2, b2):
        y = _layernorm(x, axis=-1)
        h = _gelu(torch.einsum("bsd,df->bsf", y, w1) + b1)
        return torch.einsum("bsf,fd->bsd", h, w2) + b2

    x = A_x
    h = x + _A_ref(_layernorm(x, axis=-1), A_k_cache, A_v_cache, A_wq, A_wo)
    h2 = h + _B_ref(_layernorm(h, axis=-1), B_w1, B_b1, B_w2, B_b2)
    return h2
```

```python
import re
TRANS = ("v_exp_f32", "v_log_f32", "v_rcp_f32", "v_rsq_f32", "v_sqrt_f32", "v_sin_f32", "v_cos_f32")
def regs(tok):
    tok = tok.strip()
    tok = tok.lstrip("-")
    m = re.fullmatch(r"abs\((.*)\)|\|(.*)\|", tok)
    if m: tok = m.group(1) or m.group(2)
    m = re.fullmatch(r"([vsa])(\d+)", tok)
    if m: return {(m.group(1), int(m.group(2)))}
    m = re.fullmatch(r"([vsa])\[(\d+):(\d+)\]", tok)
    if m: return {(m.group(1), i) for i in range(int(m.group(2)), int(m.group(3)) + 1)}
    if tok == "vcc": return {("s", "vcc")}
    if tok == "exec": return {("s", "exec")}
    if tok == "m0": return {("s", "m0")}
    return set()
class Ins:
    def __init__(self, line):
        self.line = line
        s = line.split(";")[0].strip()
        self.label = s[:-1] if s.endswith(":") else None
        self.real = bool(s) and not self.label and not s.startswith(".")
        self.op = ""; self.defs = set(); self.uses = set(); self.cls = None
        self.states = 0
        if not self.real: return
        parts = s.split(None, 1)
        op = self.op = parts[0]
        rest = parts[1] if len(parts) > 1 else ""
        ops = []
        depth = 0; cur = ""
        for ch in rest:
            if ch in "[(": depth += 1
            if ch in "])": depth -= 1
            if ch == "," and depth == 0: ops.append(cur); cur = ""
            else: cur += ch
        ops.append(cur)
        last = ops[-1].strip().split() if ops[-1].strip() else []
        self.mods = " ".join(last[1:])
        ops[-1] = last[0] if last else ""
        self.ops = ops = [o.strip() for o in ops]
        self.states = 1
        R = [regs(o) for o in ops]
        allu = lambda xs: set().union(*xs) if xs else set()
        self.dpp = "_dpp" in op or any(k in self.mods for k in ("quad_perm", "row_"))
        self.srcC = set(); self.srcAB = set(); self.data = set()
        if op == "s_nop": self.states = int(ops[0], 0) + 1; self.cls = "salu"
        elif op.startswith("v_mfma"):
            self.cls = "mfma"; self.defs = R[0]; self.srcAB = R[1] | R[2]; self.srcC = R[3]; self.uses = self.srcAB | self.srcC
        elif op.startswith("v_permlane"):
            self.cls = "valu"; self.defs = R[0] | R[1]; self.uses = R[0] | R[1]
        elif op.startswith("v_"):
            self.cls = "valu"; self.defs = R[0]; self.uses = allu(R[1:])
            if op.startswith(("v_fmac", "v_dot2c")): self.uses |= R[0]
            if op.startswith(("v_add_co", "v_addc_co", "v_sub_co")): self.defs |= R[1]; self.uses = allu(R[2:])
        elif op.startswith(("global_load_lds",)) or (op.startswith("buffer_load") and "lds" in self.mods.split()):
            self.cls = "vmem"; self.uses = allu(R) | {("s", "m0")}; self.dma = True
        elif op.startswith(("global_load", "buffer_load")):
            self.cls = "vmem"; self.defs = R[0]; self.uses = allu(R[1:])
        elif op.startswith(("global_store", "global_atomic")):
            self.cls = "vmem"; self.uses = allu(R)
            if op.endswith(("x3", "x4")): self.data = R[1]
        elif op.startswith(("buffer_wbl2", "buffer_inv")):
            self.cls = "vmem"
        elif op.startswith("buffer_store"):
            self.cls = "vmem"; self.uses = allu(R)
            if op.endswith(("x3", "x4")): self.data = R[0]
        elif op.startswith("ds_read") or op.startswith("ds_bpermute") or op.startswith("ds_swizzle"):
            self.cls = "ds"; self.defs = R[0]; self.uses = allu(R[1:])
        elif op.startswith("ds_"):
            self.cls = "ds"; self.uses = allu(R)
        elif op.startswith("s_"):
            self.cls = "salu"
            if op.startswith(("s_cmp", "s_cbranch", "s_branch", "s_waitcnt", "s_barrier", "s_sleep", "s_endpgm", "s_setprio", "s_bitcmp")):
                self.uses = allu(R)
            else:
                self.defs = R[0] if R else set(); self.uses = allu(R[1:])
                if op.startswith(("s_addk", "s_mulk")): self.uses |= R[0]
        else:
            raise ValueError("unknown op " + line)
    def target(self):
        if self.op.startswith(("s_cbranch", "s_branch")): return self.ops[0]
        return None
def V(s): return {r for r in s if r[0] in "va"}
def S(s): return {r for r in s if r[0] == "s"}
def need(p, c):
    n = 0
    if p.cls == "valu":
        dv = V(p.defs); ds = S(p.defs)
        if c.cls == "mfma" and dv & c.uses: n = max(n, 2)
        if c.cls == "valu" and c.dpp and dv & regs(c.ops[1]): n = max(n, 2)
        if c.op.startswith("v_permlane") and dv & c.uses: n = max(n, 2)
        if p.op.replace("_e32", "").replace("_e64", "") in TRANS and c.cls in ("valu",) and dv & c.uses: n = max(n, 1)
        if c.op.startswith(("v_readfirstlane", "v_readlane")) and dv & c.uses: n = max(n, 1)
        if ds:
            if c.cls == "valu" and ds & c.uses: n = max(n, 4 if c.op.startswith(("v_readlane", "v_writelane")) else 2)
            if c.cls == "vmem" and ds & c.uses: n = max(n, 5)
        if "sdwa" in p.op or "op_sel" in p.mods:
            if c.cls == "valu" and dv & (c.uses | c.defs): n = max(n, 1)
    if p.cls == "mfma":
        assert "16x16" in p.op and "bf16" in p.op, p.line
        if c.cls == "mfma":
            if p.defs & c.srcAB: n = max(n, 8)
            if p.defs & c.srcC and p.defs != c.srcC: n = max(n, 6)
            if p.defs & c.defs and not (p.defs & c.srcC): n = max(n, 8)
        elif c.cls in ("valu", "vmem", "ds") and p.defs & (c.uses | c.defs): n = max(n, 8)
        if c.cls == "valu" and p.srcC & c.defs: n = max(n, 3)
    if p.cls == "salu" and ("s", "m0") in p.defs and getattr(c, "dma", False): n = max(n, 1)
    if p.cls == "vmem" and p.data and p.data & c.defs: n = max(n, 2)
    return n
def deficit(prev, c):
    d = 0; dist = 0
    for p in reversed(prev):
        d = max(d, need(p, c) - dist)
        dist += p.states
        if dist >= 8: break
    return d
def nops(n):
    return [Ins(f"s_nop {n-1}")] if n > 0 else []
def run(lines):
    ins = [Ins(l) for l in lines]
    for _ in range(20):
        out = []; prev = []
        for i in ins:
            if i.real:
                d = deficit(prev, i)
                for x in nops(d): out.append(x); prev.append(x)
                prev.append(i)
                if i.op in ("s_branch", "s_endpgm"): prev = []
            out.append(i)
        ins = out
        lab = {i.label: k for k, i in enumerate(ins) if i.label}
        fix = None
        for k, i in enumerate(ins):
            t = i.target() if i.real else None
            if t is None: continue
            prev = [x for x in ins[max(0, k - 12):k + 1] if x.real]
            added = []
            for j in range(lab[t] + 1, min(len(ins), lab[t] + 12)):
                c = ins[j]
                if not c.real: continue
                d = deficit(prev + added, c)
                if d > 0: fix = (j, d); break
                added.append(c)
                if c.op in ("s_branch", "s_endpgm"): break
            if fix: break
        if not fix: return [i.line for i in ins]
        ins[fix[0]:fix[0]] = nops(fix[1])
    raise RuntimeError("hazard pass did not converge")
```

```python
import sys, struct
import hazard
NAME = "sequential_preLN__sliding_block_cached__mixer_channel_mlp__decode"
def f2u(x): return struct.unpack("<I", struct.pack("<f", x))[0]

EP, FL, H2, H1, H4, QP = 0x0, 0x1000, 0x4000, 0x10000, 0x30000, 0xe0000
GF = 0x2000
H2S = 3072
ST = H2 + 2304
TAGMUL, TAGADD = 0x9E3779B1, 0x7F4A7C15
STAMP_OFF = 512 << 20
ROLE, LV, QM, XR = 3600, 2976, 3008, 20480
XN, Q, STATW, CNT, CF, ONES, SS, DUMP, Y, T, FIN, OP, RED, WQ, W = (
    0, 2304, 2816, 2944, 3072, 3200, 3328, 3584, 3840, 6144, 6144, 12288, 20480, 24576, 45056)
LDS_SIZE = W + 73728
NMAX = 18
KR, VR = 24, 96
LOG2E = 1.4426950408889634
SPIN = 1 << 15

def mk_table(a=(13, 13), b=(17,)*6, last=(13, 14, 14, 17, 17, 17, 18, 18)):
    t = []; k = 0
    for q in range(3):
        row = [(1, 2*q, a[0]), (1, 2*q+1, a[1])]
        for n in b: row.append((0, k & 1, n)); k += 1
        t.append(row)
    row = [(1, 6+i, last[i]) for i in range(3)]
    for n in last[3:]: row.append((0, k & 1, n)); k += 1
    t.append(row)
    return t
DEFAULT_TABLE = mk_table(last=(13, 13, 13, 18, 18, 18, 18, 17))

def gen1(code_lines, D=5, J=9, EARLY2=0, stamp=False, table=DEFAULT_TABLE, local=True, swave=0, fine=False, noround=False, stagger=True, fine2=False, s2sleep=0, s1sleep=0, w1a='', kvf='nt', masked=True, tick_lv=False, lvpos=0, p3=3, p3s=0, p2=0, p2s=0, p1=0, ntr=(22, 44, 64), ntrs=4, lvall=True, pollearly=False, latebe=False, trth=40, wb=0, wbs=16, outf='', s3d=0, gate=None, hsleep=2, egate=6, dpat=(0,), xpat=(1,), NSKIP=5, pw2=False, ra=3, rb=5, wx=0, h4pf=2, h4f='', qmark=0, b5early=True, gf=0):
    L = []
    def a(s):
        for x in s.split("\n"):
            x = x.strip()
            if x: L.append(x)
    def STAMP(i):
        if stamp: a(f"s_memrealtime s[{64+2*i}:{65+2*i}]")
    DPPF = "row_mask:0xf bank_mask:0xf"
    def row_sum(r, op="v_add_f32"):
        for k in (8, 4, 2, 1): a(f"{op}_dpp v{r}, v{r}, v{r} row_ror:{k} {DPPF}")
    def oct_red(r, op):
        a(f"{op}_dpp v{r}, v{r}, v{r} quad_perm:[1,0,3,2] {DPPF}")
        a(f"{op}_dpp v{r}, v{r}, v{r} quad_perm:[2,3,0,1] {DPPF}")
        a(f"{op}_dpp v{r}, v{r}, v{r} row_half_mirror {DPPF}")
    def round2(x, y, tmp):
        a(f"v_cvt_pk_bf16_f32 v{tmp}, v{x}, v{y}")
        a(f"v_lshlrev_b32 v{x}, 16, v{tmp}")
        a(f"v_and_b32 v{y}, 0xffff0000, v{tmp}")
    def round1(x):
        a(f"v_cvt_pk_bf16_f32 v{x}, v{x}, v{x}")
        a(f"v_lshlrev_b32 v{x}, 16, v{x}")
    def pkadd(x, y, d=None):
        d = x if d is None else d
        a(f"v_pk_add_f32 v[{d}:{d+1}], v[{x}:{x+1}], v[{y}:{y+1}]")
    def srd(base, nbytes, dst=40):
        a(f"s_mov_b32 s{dst}, s{base}\ns_mov_b32 s{dst+1}, s{base+1}\ns_mov_b32 s{dst+2}, {nbytes}\ns_mov_b32 s{dst+3}, 0x20000")
    def sel_masks(lane, dst, tmp):
        a(f"v_and_b32 v{tmp}, 1, v{lane}")
        a(f"v_lshlrev_b32 v{tmp}, 4, v{tmp}")
        a(f"s_mov_b32 s47, 0xffff\nv_lshlrev_b32 v{tmp}, v{tmp}, s47")
        a(f"v_bfe_u32 v{tmp+1}, v{lane}, 1, 2")
        for k in range(4):
            a(f"v_cmp_eq_u32 vcc, {k}, v{tmp+1}")
            a(f"v_cndmask_b32 v{dst+k}, 0, v{tmp}, vcc")
    def tr_addr128(lane, dst, tmp, base_s, perm=(0, 2, 1, 3)):
        a(f"v_lshrrev_b32 v{tmp}, 2, v{lane}")
        a(f"v_bfe_u32 v{tmp+1}, v{lane}, 3, 2")
        a(f"v_lshl_add_u32 v{tmp}, v{tmp}, 7, s{base_s}")
        a(f"v_lshl_add_u32 v{tmp}, v{tmp+1}, 5, v{tmp}")
        a(f"v_and_b32 v{tmp+1}, 3, v{lane}")
        a(f"v_lshl_add_u32 v{dst}, v{tmp+1}, 3, v{tmp}")
        for ct in (1, 2, 3): a(f"v_xor_b32 v{dst+ct}, {perm[ct]*32}, v{dst}")
    def dma_chunk128(lane, dst, tmp):
        a(f"v_lshrrev_b32 v{tmp}, 3, v{lane}")
        a(f"v_and_b32 v{dst}, 6, v{tmp}")
        a(f"v_xor_b32 v{dst}, v{dst}, v{lane}")
        a(f"v_and_b32 v{dst}, 7, v{dst}")
        a(f"v_lshlrev_b32 v{dst}, 4, v{dst}")
    def w1_voff(lane, dst, tmp):
        a(f"v_lshrrev_b32 v{dst}, 3, v{lane}")
        a(f"v_and_b32 v{tmp+1}, 2, v{dst}")
        a(f"v_bfe_u32 v{tmp}, v{lane}, 2, 1")
        a(f"v_lshl_add_u32 v{dst}, v{tmp}, 4, v{dst}")
        a(f"v_mul_u32_u24 v{dst}, 9216, v{dst}")
        a(f"v_xor_b32 v{tmp}, v{tmp+1}, v{lane}")
        a(f"v_and_b32 v{tmp}, 3, v{tmp}")
        a(f"v_lshl_add_u32 v{dst}, v{tmp}, 4, v{dst}")
    def w2_voff(lane, dst, tmp):
        dma_chunk128(lane, dst, tmp)
        a(f"v_mul_u32_u24 v{tmp}, 1152, v{tmp}")
        a(f"v_add_u32 v{dst}, v{dst}, v{tmp}")
    def s2_dma(k, v1off, v2off):
        if k < 4:
            if k == 2: a(f"s_xor_b32 s51, s51, 2048\ns_add_u32 s48, s48, s56")
            a(f"s_add_u32 m0, s51, {(k & 1)*1024}\ns_add_u32 s45, s48, {(k & 1)*8*9216}")
            a(f"buffer_load_dwordx4 v{v1off}, s[40:43], s45 offen {w1a if k < 2 else 'nt'} lds")
        else:
            a(f"s_add_u32 m0, s50, {36864 + (k-4)*1024}")
            a(f"s_add_u32 s45, s49, {(k-4)*8*1152}")
            a(f"buffer_load_dwordx4 v{v2off}, s[52:55], s45 offen nt lds")
    def s2_setup():
        a(f"s_mul_i32 s48, s33, {64*9216}\ns_lshl_b32 s45, s38, 6\ns_add_u32 s48, s48, s45\ns_add_u32 s18, s18, s45\ns_addc_u32 s19, s19, 0")
        a(f"s_mul_i32 s49, s38, {32*1152}\ns_lshl_b32 s45, s33, 7\ns_add_u32 s49, s49, s45")
        a(f"s_bitcmp1_b32 s38, 0\ns_cselect_b32 s44, {32*9216}, 0\ns_cselect_b32 s51, 2048, 0\ns_add_u32 s48, s48, s44\ns_add_u32 s51, s51, s50")
        a(f"s_lshl_b32 s44, s44, 1\ns_sub_u32 s56, {32*9216}, s44")
    def s2_pre(t0):
        srd(16, 576*4608*2, 40); srd(20, 4608*576*2, 52)
        a(f"s_lshl_b32 s50, s33, 12\ns_add_u32 s50, s50, {W}")
        w1_voff(0, 6, t0); w2_voff(0, 7, t0)
        a(f"v_bfe_u32 v{t0}, v0, 2, 1\nv_and_b32 v21, 3, v0\nv_lshl_add_u32 v21, v{t0}, 4, v21\nv_lshrrev_b32 v{t0}, 4, v0\nv_lshl_add_u32 v21, v{t0}, 2, v21\nv_lshlrev_b32 v21, 1, v21")

    def ppoll(name, regs, loads, depth, slp, tmp, init=True, tagged=None):
        if init:
            for r in regs:
                for k in range(4): a(f"v_mov_b32 v{r+k}, -1")
            for k in range(len(regs)): a(f"s_mov_b64 s[{94+2*k}:{95+2*k}], -1")
        a(f"L_{name}p:")
        for k, r in enumerate(regs):
            a(f"s_mov_b64 exec, s[{94+2*k}:{95+2*k}]\ns_cbranch_execz L_{name}n{k}")
            a(loads[k])
            a(f"L_{name}n{k}:")
        a("s_mov_b64 exec, -1")
        if slp: a(f"s_sleep {slp}")
        a(f"s_waitcnt vmcnt({len(regs)*(depth-1)})")
        a(f"s_sub_u32 s46, s46, 1\ns_cbranch_scc1 L_{name}t")
        a(f"L_{name}c:")
        if tagged:
            for k, r in enumerate(regs):
                y = tagged + 4*k
                for j in range(4): a(f"v_xor_b32 v{y+j}, s{62 + (j & 1)}, v{r+j}")
                a(f"v_or3_b32 v{tmp+k}, v{y}, v{y+1}, v{y+2}\nv_or_b32 v{tmp+k}, v{tmp+k}, v{y+3}\nv_lshlrev_b32 v{tmp+k}, 20, v{tmp+k}")
                a(f"v_cmp_ne_u32 s[{94+2*k}:{95+2*k}], 0, v{tmp+k}")
        else:
            for k, r in enumerate(regs):
                a(f"v_max3_u32 v{tmp+k}, v{r}, v{r+1}, v{r+2}")
            for k, r in enumerate(regs):
                a(f"v_max_u32 v{tmp+k}, v{tmp+k}, v{r+3}")
            for k, r in enumerate(regs):
                a(f"v_cmp_eq_u32 s[{94+2*k}:{95+2*k}], -1, v{tmp+k}")
        a("s_or_b64 s[44:45], s[94:95], s[96:97]")
        for k in range(2, len(regs)): a(f"s_or_b64 s[44:45], s[44:45], s[{94+2*k}:{95+2*k}]")
        a(f"s_cbranch_scc1 L_{name}p")
        a(f"L_{name}t:")

    ends = []
    for p in table:
        e = 0; w = 0
        for i, (_, _, n) in enumerate(p):
            e += n; w |= e << (8 * i)
        ends.append(w)
    assert ends[0] == ends[1] == ends[2]
    a("s_load_dwordx16 s[4:19], s[0:1], 0")
    STAMP(0)
    a("v_readfirstlane_b32 s33, v0")
    a("s_cmpk_ge_u32 s2, 0x100\ns_cbranch_scc1 L_exit")
    a("s_getpc_b64 s[48:49]\nL_pc:")
    a("s_lshr_b32 s32, s2, 3")
    a("s_cmp_eq_u32 s33, 0\ns_cbranch_scc1 L_svc0")
    a(f"s_and_b32 s3, s32, 1\ns_mulk_i32 s3, {code_lines*64}\ns_addk_i32 s3, -8192")
    a(f"v_min_u32 v1, {64 + code_lines//2-1}, v0\nv_lshl_add_u32 v1, v1, 7, s3")
    a("global_load_dword v7, v1, s[48:49]")
    a("v_and_b32 v0, 63, v0")
    dma_chunk128(0, 3, 4)
    a("v_lshl_add_u32 v3, v4, 13, v3")
    a(f"s_lshl4_add_u32 m0, s33, {WQ - 1024}")
    a("s_and_b32 s31, s2, 7\ns_lshr_b32 s37, s32, 4\ns_lshl1_add_u32 s37, s31, s37")
    a("s_bfe_u32 s44, s32, 0x20002\ns_mulk_i32 s44, 1152\ns_add_u32 s44, s44, s33\ns_addk_i32 s44, -64")
    a("s_and_b32 s45, s32, 3\ns_lshl2_add_u32 s45, s37, s45\ns_lshl3_add_u32 s44, s44, s45\ns_lshl_b32 s44, s44, 7")
    a("v_add_u32 v3, s44, v3\ns_mov_b32 s44, 0x80000\nv_add_u32 v4, s44, v3\nv_add_u32 v5, s44, v4")
    a("s_waitcnt lgkmcnt(0)")
    STAMP(1)
    a("global_load_lds_dwordx4 v3, s[10:11] nt")
    a("s_addk_i32 m0, 0x2000\ns_cmpk_lt_u32 s33, 192")
    a("global_load_lds_dwordx4 v4, s[10:11] nt")
    a("s_cbranch_scc0 L_wq2")
    a("s_addk_i32 m0, 0x2000")
    a("global_load_lds_dwordx4 v5, s[10:11] nt")
    a("s_branch L_wq2")
    a("L_end256:")
    a(".p2align 8")
    a("L_svc0:")
    a("s_setprio 3")
    a("v_mul_u32_u24 v2, 36, v0")
    a("s_waitcnt lgkmcnt(0)")
    a("global_load_dwordx4 v[10:13], v2, s[4:5]\nglobal_load_dwordx4 v[14:17], v2, s[4:5] offset:16\nglobal_load_dword v18, v2, s[4:5] offset:32")
    a("v_lshlrev_b32 v40, 2, v0\nv_mov_b32 v56, -1\nv_mov_b32 v57, -1\nv_mov_b32 v3, 0\nv_mov_b32 v4, 0x3f803f80")
    a(f"ds_write2st64_b32 v40, v56, v57 offset0:{Q//256} offset1:{Q//256+1}")
    a(f"ds_write2st64_b32 v40, v3, v4 offset0:{STATW//256} offset1:{CF//256}")
    a("s_waitcnt lgkmcnt(0)")
    a("s_load_dwordx8 s[20:27], s[0:1], 64\ns_load_dwordx2 s[28:29], s[0:1], 96")
    a("s_barrier")
    a("s_branch L_service")

    a("L_wq2:")
    a(f"s_mov_b32 s44, {ends[0] & 0xffffffff:#x}\ns_mov_b32 s45, {ends[0] >> 32:#x}\ns_cmp_ge_u32 s32, 24")
    a(f"s_cselect_b32 s44, {ends[3] & 0xffffffff:#x}, s44\ns_cselect_b32 s45, {ends[3] >> 32:#x}, s45")
    a("s_lshl_b32 s46, s32, 3\ns_lshr_b64 s[44:45], s[44:45], s46")
    if ra: a(f"s_mul_i32 s45, s31, {ra}\ns_add_u32 s44, s44, s45")
    if rb: a(f"s_lshr_b32 s45, s32, 3\ns_mul_i32 s45, s45, {rb}\ns_add_u32 s44, s44, s45")
    a(f"s_add_u32 s44, s44, {128 + NSKIP - NMAX}\ns_and_b32 s44, s44, 127\ns_lshl_b32 s44, s44, 13")
    a("s_lshl4_add_u32 s46, s33, -1024")
    if wx: a(f"s_and_b32 s45, s32, {wx}\ns_lshl_b32 s45, s45, 10\ns_xor_b32 s46, s46, s45")
    a("s_add_u32 s46, s46, s44")
    a("v_bfe_u32 v5, v0, 2, 2\nv_lshrrev_b32 v4, 4, v0\nv_and_b32 v1, 3, v0")
    a("v_lshl_add_u32 v1, v1, 4, s46\nv_lshl_add_u32 v1, v4, 6, v1\nv_lshl_add_u32 v1, v5, 8, v1")
    a("s_and_b32 s3, s32, 8\ns_lshl1_add_u32 s3, s3, s37\ns_lshl3_add_u32 s3, s3, 7\ns_lshl_b32 s3, s3, 20")
    a("s_add_u32 s6, s6, s3\ns_addc_u32 s7, s7, 0\ns_mov_b32 s57, 0xfffff")
    if not latebe: a("s_barrier")
    issued = [1]
    def throttle():
        if issued[0] >= D:
            a(f"s_waitcnt vmcnt({D-1-dpat[issued[0] % len(dpat)]})")
            if xpat and issued[0] > D and xpat[issued[0] % len(xpat)]:
                a(f"s_cmp_eq_u32 s63, 0\ns_cbranch_scc0 L_x{issued[0]}\ns_waitcnt vmcnt({D-1-xpat[issued[0] % len(xpat)]})\nL_x{issued[0]}:")
        issued[0] += 1
    def load_unit(kind, t):
        base, areg, sb = (KR, 1, "s[6:7]") if kind == "K" else (VR, 2, "s[8:9]")
        if t < NSKIP: a(f"s_cmp_ge_u32 s34, {NMAX-t}\ns_cbranch_scc0 L_skip{kind}{t}")
        throttle()
        a(f"global_load_dwordx4 v[{base+4*t}:{base+4*t+3}], v{areg}, {sb} {kvf}")
        if t < NSKIP: a(f"L_skip{kind}{t}:")
        if kind == "K" and t == NMAX - 1: a(f"v_subrev_u32 v1, {(NMAX-1)*8192}, v1\nv_and_b32 v1, s57, v1")
        elif t != (NMAX - 1 if kind == "V" else NSKIP - 1): a(f"v_add_u32 v{areg}, 0x2000, v{areg}\nv_and_b32 v{areg}, s57, v{areg}")
    for t in list(range(NSKIP, NMAX)) + list(range(NSKIP)):
        load_unit("K", t)
        if t == NSKIP + D - 2:
            STAMP(3)
            if latebe: a("s_barrier")
            a("s_lshl2_add_u32 s47, s32, L_table-L_pc")
            a("s_load_dword s30, s[48:49], s47\ns_load_dwordx8 s[20:27], s[0:1], 64\ns_load_dwordx2 s[28:29], s[0:1], 96")
            a("s_lshr_b32 s33, s33, 6\ns_sub_u32 s39, s33, 1")
            a(f"s_sub_u32 s46, s46, {NSKIP*8192}\ns_and_b32 s46, s46, s57\nv_lshl_add_u32 v2, v0, 4, s46")
            a("s_add_u32 s8, s8, s3\ns_addc_u32 s9, s9, 0")
            for tt in range(NSKIP):
                for k in range(4): a(f"v_mov_b32 v{KR+4*tt+k}, 0\nv_mov_b32 v{VR+4*tt+k}, 0")
            sel_masks(0, 12, 3)
            a("v_bfe_u32 v3, v0, 3, 1\nv_lshrrev_b32 v4, 4, v0\nv_and_b32 v20, 3, v0")
            a("v_lshlrev_b32 v20, 4, v20\nv_lshl_add_u32 v20, v4, 6, v20\nv_lshl_add_u32 v20, v3, 8, v20")
            for k in range(4): a(f"v_mov_b32 v{16+k}, 0")
            if xpat: a("s_getreg_b32 s63, hwreg(HW_REG_XCC_ID)\ns_and_b32 s63, s63, 1")
            a("s_lshl_b32 s3, s39, 2\nv_mov_b32 v3, s3\nv_mov_b32 v4, 1")
            a("s_waitcnt lgkmcnt(0)")
            a("s_bfe_u32 s34, s30, 0x50008\ns_bfe_u32 s35, s30, 0x20010\ns_bfe_u32 s36, s30, 0x50018")
        if t == NSKIP + D - 1:
            STAMP(2)
            a(f"ds_write_b32 v3, v4 offset:{CNT}")
        if qmark and t == qmark: a(f"ds_write_b32 v3, v4 offset:{QM}")
    a("s_cmp_eq_u32 s35, 1\ns_cbranch_scc0 L_nowo")
    srd(12, 4096*576*2)
    dma_chunk128(0, 3, 4)
    a("v_and_b32 v4, 3, v4\nv_lshrrev_b32 v5, 5, v0\nv_lshl_add_u32 v4, v5, 4, v4")
    a("v_mul_u32_u24 v4, 1152, v4\nv_add_u32 v3, v3, v4")
    a("s_lshl_b32 s44, s31, 9\ns_lshr_b32 s45, s39, 1\ns_lshl_b32 s45, s45, 7\ns_add_u32 s44, s44, s45")
    a("s_and_b32 s45, s39, 1\ns_lshl_b32 s45, s45, 2\ns_add_u32 s44, s44, s45")
    a("s_mul_i32 s44, s44, 1152\ns_lshl_b32 s45, s36, 7\ns_add_u32 s44, s44, s45")
    a(f"s_lshl_b32 s47, s39, 13\ns_add_u32 s47, s47, {W}")
    for k in range(8):
        u, eh, gh = k >> 2, (k >> 1) & 1, k & 1
        a(f"s_add_u32 s45, s44, {(64*u + 32*gh + 8*eh)*1152}")
        a(f"s_add_u32 m0, s47, {k*1024}")
        a(f"s_waitcnt vmcnt({D-1})")
        a("buffer_load_dwordx4 v3, s[40:43], s45 offen nt lds")
    a("L_nowo:")
    ORDER = [0, 1, 4, 5, 6, 7, 2, 3] if stagger else list(range(8))
    s2_pre(3)
    a("s_lshl_b32 s3, s39, 2\nv_mov_b32 v1, s3")
    assert J >= NSKIP + D - 1
    for t in range(J): load_unit("V", t)
    nextv = [J]
    def more_v():
        if nextv[0] < NMAX: load_unit("V", nextv[0]); nextv[0] += 1
    for t in range(NSKIP):
        a(f"s_cmp_ge_u32 s34, {NMAX-t}\ns_cselect_b32 s{94+t}, 0, 0xff800000")
    a(f"s_mov_b32 s61, {f2u(128**-0.5)}\ns_mov_b32 s62, {f2u(LOG2E)}\ns_mov_b32 s46, {SPIN*8}")
    more_v()
    STAMP(4)
    a("L_qw:")
    a(f"ds_read_b128 v[8:11], v20 offset:{Q}\ns_waitcnt lgkmcnt(0)")
    a("v_max3_u32 v3, v8, v9, v10\nv_max_u32 v3, v3, v11\nv_cmp_eq_u32 vcc, -1, v3\ns_cbranch_vccz L_qok")
    a("s_sleep 1\ns_sub_u32 s46, s46, 1\ns_cbranch_scc0 L_qw")
    a("L_qok:")
    STAMP(5)
    k_ = lambda t, r=0: KR + 4*t + r
    def diag(t):
        a(f"v_mov_b32_dpp v{k_(t)}, v{k_(t)} quad_perm:[0,0,0,0] {DPPF}")
        for r in (1, 2, 3): a(f"v_add_f32_dpp v{k_(t)}, v{k_(t,r)}, v{k_(t)} quad_perm:[{r},{r},{r},{r}] {DPPF}")
    LAG = 3
    for t in range(NMAX + LAG):
        if t < NMAX: a(f"v_mfma_f32_16x16x32_bf16 v[{k_(t)}:{k_(t,3)}], v[{k_(t)}:{k_(t,3)}], v[8:11], 0")
        if t >= LAG: diag(t - LAG)
    more_v()
    for t in range(0, NMAX, 2):
        if not noround: round2(k_(t), k_(t+1), 3)
        a(f"v_mul_f32 v{k_(t)}, s61, v{k_(t)}\nv_mul_f32 v{k_(t+1)}, s61, v{k_(t+1)}")
        if not noround: round2(k_(t), k_(t+1), 3)
    for t in range(NSKIP): a(f"v_add_f32 v{k_(t)}, s{94+t}, v{k_(t)}")
    a(f"v_max_f32 v4, v{k_(0)}, v{k_(1)}")
    for t in range(2, NMAX, 2): a(f"v_max3_f32 v4, v{k_(t)}, v{k_(t+1)}, v4")
    more_v()
    for sw in (16, 32):
        a(f"v_mov_b32 v3, v4\nv_permlane{sw}_swap_b32 v4, v3\nv_max_f32 v4, v4, v3")
    a("v_mul_f32 v4, s62, v4")
    a("v_mov_b32 v5, 0")
    for t in range(NMAX):
        a(f"v_fma_f32 v{k_(t)}, v{k_(t)}, s62, -v4")
    for t in range(NMAX):
        a(f"v_exp_f32 v{k_(t)}, v{k_(t)}")
    for t in range(NMAX):
        a(f"v_add_f32 v5, v5, v{k_(t)}")
        a(f"v_cvt_pk_bf16_f32 v{k_(t)}, v{k_(t)}, v{k_(t)}")
    for sw in (16, 32):
        a(f"v_mov_b32 v3, v5\nv_permlane{sw}_swap_b32 v5, v3\nv_add_f32 v5, v5, v3")
    a("v_bfe_u32 v3, v0, 3, 1\ns_lshl_b32 s3, s39, 3\nv_lshl_add_u32 v3, v3, 6, s3")
    a(f"ds_write_b64 v3, v[4:5] offset:{STATW}")
    STAMP(6)
    more_v()
    for t in range(NMAX):
        for r in (3, 2, 1, 0): a(f"v_and_b32 v{k_(t,r)}, v{12+r}, v{k_(t)}")
    a("s_lshl_b32 s3, s39, 10\nv_lshl_add_u32 v3, v0, 4, s3")
    def pv(t): a(f"v_mfma_f32_16x16x32_bf16 v[16:19], v[{k_(t)}:{k_(t,3)}], v[{VR+4*t}:{VR+4*t+3}], v[16:19]")
    done = 0
    while nextv[0] < NMAX:
        n = nextv[0]; more_v()
        if n == NMAX - 1 - lvpos: a(f"ds_write_b32 v1, v5 offset:{LV}")
        while done <= n - D: pv(done); done += 1
    while done < NMAX:
        a(f"s_waitcnt vmcnt({min(NMAX-1-done, D-1)})")
        hi = max(done, NMAX - D)
        while done <= hi: pv(done); done += 1
    STAMP(7)
    a(f"ds_write_b128 v3, v[16:19] offset:{OP}")
    a("s_waitcnt lgkmcnt(0)\ns_barrier")
    STAMP(8)
    a("s_cmp_eq_u32 s35, 1\ns_cbranch_scc0 L_dyn")
    a(f"s_lshl3_add_u32 s3, s31, s39\ns_lshl_b32 s3, s3, 11\ns_add_u32 s3, s3, {H1}")
    a("v_lshl_add_u32 v2, v0, 4, s3")
    a(f"s_lshr_b32 s3, s39, 1\ns_lshl_b32 s3, s3, 6\ns_mul_i32 s44, s31, {H2S}\ns_add_u32 s3, s3, s44\ns_add_u32 s3, s3, {ST}")
    a("v_and_b32 v1, 48, v0\nv_add_u32 v1, s3, v1")
    a("global_load_dwordx4 v[20:23], v1, s[28:29] sc1")
    a("global_load_dwordx4 v[24:27], v2, s[28:29] sc1\nglobal_load_dwordx4 v[28:31], v2, s[28:29] offset:1024 sc1")
    tr_addr128(0, 4, 16, 47)
    for u in range(2):
        for ct in range(4):
            for eh in range(2):
                r = 64 + (u*4 + ct)*4 + 2*eh
                a(f"ds_read_b64_tr_b16 v[{r}:{r+1}], v{4+ct} offset:{(32*u + 16*eh)*128}")
    a("s_lshl_b32 s3, s39, 9\nv_lshl_add_u32 v3, v0, 3, s3")
    a(f"s_mov_b32 s46, {SPIN}\ns_waitcnt vmcnt(2)")
    a("L_fw:")
    a("v_max3_u32 v8, v20, v21, v22\nv_max_u32 v8, v8, v23\nv_cmp_eq_u32 vcc, -1, v8\ns_cbranch_vccnz L_fretry")
    a("L_fok:")
    a("v_max3_f32 v8, v20, v21, v22\nv_max_f32 v8, v8, v23\nv_mov_b32 v9, v8\nv_permlane16_swap_b32 v8, v9\nv_max_f32 v8, v8, v9")
    for r in range(4): a(f"v_sub_f32 v{20+r}, v{20+r}, v8")
    for r in range(4): a(f"v_exp_f32 v{20+r}, v{20+r}")
    a("v_add_f32 v8, v20, v21\nv_add_f32 v9, v22, v23\nv_add_f32 v8, v8, v9\nv_mov_b32 v9, v8\nv_permlane16_swap_b32 v8, v9\nv_add_f32 v8, v8, v9")
    a("v_rcp_f32 v8, v8")
    for r in range(4): a(f"v_mul_f32 v{20+r}, v8, v{20+r}")
    a(f"s_mov_b32 s46, {SPIN}\ns_waitcnt lgkmcnt(0)")
    STAMP(9)
    a("L_s1poll:")
    if p1:
        a("s_waitcnt vmcnt(0)\ns_branch L_h1c")
        ppoll("h1", [24, 28], [f"global_load_dwordx4 v[{24+4*k}:{27+4*k}], v2, s[28:29] offset:{1024*k} sc1" for k in range(2)], p1, 0, 8, init=False)
    else:
        a("s_waitcnt vmcnt(0)")
        a("v_max3_u32 v8, v24, v25, v26\nv_max3_u32 v9, v27, v28, v29\nv_max3_u32 v8, v30, v31, v8\nv_max_u32 v8, v8, v9")
        a("v_cmp_eq_u32 vcc, -1, v8\ns_cbranch_vccnz L_s1retry")
    a("L_s1go:")
    STAMP(10)
    for ct in range(4):
        for u in range(2):
            r = 64 + (u*4 + ct)*4; d = 32 + 4*ct
            a(f"v_mfma_f32_16x16x32_bf16 v[{d}:{d+3}], v[{24+4*u}:{27+4*u}], v[{r}:{r+3}], {'0' if u == 0 else f'v[{d}:{d+3}]'}")
    def scale(ct):
        d = 32 + 4*ct
        a(f"v_pk_mul_f32 v[{d}:{d+1}], v[{d}:{d+1}], v[20:21]\nv_pk_fma_f32 v[{d}:{d+1}], v[{d+2}:{d+3}], v[22:23], v[{d}:{d+1}]\nv_add_f32 v{d}, v{d}, v{d+1}")
    scale(0); scale(1); scale(2)
    a("v_permlane16_swap_b32 v32, v36")
    scale(3)
    a("v_add_f32 v32, v32, v36")
    a("v_permlane16_swap_b32 v40, v44\nv_add_f32 v33, v40, v44")
    a(f"ds_write_b64 v3, v[32:33] offset:{RED}")
    STAMP(11)
    a("s_waitcnt lgkmcnt(0)\ns_barrier")
    if stamp: a("s_branch L_fin")
    a("L_exit:\ns_endpgm")
    a("L_s1retry:")
    a("s_sub_u32 s46, s46, 1\ns_cbranch_scc1 L_s1go")
    if s1sleep: a(f"s_sleep {s1sleep}")
    if masked: a("s_mov_b64 exec, vcc")
    a("global_load_dwordx4 v[24:27], v2, s[28:29] sc1\nglobal_load_dwordx4 v[28:31], v2, s[28:29] offset:1024 sc1")
    if masked: a("s_mov_b64 exec, -1")
    a("s_branch L_s1poll")
    a("L_fretry:")
    a("s_sub_u32 s46, s46, 1\ns_cbranch_scc1 L_fok")
    a("global_load_dwordx4 v[20:23], v1, s[28:29] sc1\ns_waitcnt vmcnt(0)\ns_branch L_fw")

    a("L_service:")
    a("s_and_b32 s31, s2, 7\ns_lshr_b32 s37, s32, 4\ns_lshl1_add_u32 s37, s31, s37")
    a("s_lshl2_add_u32 s47, s32, L_table-L_pc")
    a("s_load_dword s30, s[48:49], s47")
    a("s_bfe_u32 s38, s32, 0x20002\ns_and_b32 s39, s32, 3")
    a("s_getreg_b32 s51, hwreg(HW_REG_XCC_ID)")
    a(f"s_and_b32 s51, s51, 15\ns_movk_i32 s57, {Q}")
    a(f"s_mov_b32 s3, {WQ}"); tr_addr128(0, 44, 41, 3, (0, 1, 2, 3))
    a("v_bfe_u32 v4, v0, 3, 1\nv_mul_u32_u24 v4, 1152, v4\nv_lshrrev_b32 v41, 4, v0\nv_lshl_add_u32 v4, v41, 3, v4")
    a("s_mul_i32 s3, s38, 288\nv_add_u32 v4, s3, v4")
    a("v_and_b32 v3, 16, v0\nv_cmp_ne_u32 s[58:59], 0, v3")
    a(f"s_lshl2_add_u32 s3, s37, s38\ns_lshl3_add_u32 s3, s3, s39\ns_lshl_b32 s3, s3, 8\ns_add_u32 s3, s3, {QP}")
    a("v_and_b32 v43, 31, v0\nv_lshl_add_u32 v43, v43, 3, s3\nv_lshrrev_b32 v3, 5, v0\nv_lshl_add_u32 v43, v3, 10, v43")
    a("v_and_b32 v6, 28, v40")
    a(f"s_waitcnt lgkmcnt(0)\ns_load_dword s62, s[28:29], {EP}")
    a("s_waitcnt vmcnt(0)")
    for r in range(9):
        a(f"v_lshlrev_b32 v{20+2*r}, 16, v{10+r}\nv_and_b32 v{21+2*r}, 0xffff0000, v{10+r}")
        a(f"ds_write_b32 v2, v{10+r} offset:{XR + 4*r}")
    pkadd(20, 22, 38)
    for r in range(2, 9): pkadd(38, 20 + 2*r)
    a("v_add_f32 v38, v38, v39")
    def half_sum(r, tmp):
        row_sum(r); a(f"v_mov_b32 v{tmp}, v{r}\nv_permlane16_swap_b32 v{r}, v{tmp}\nv_add_f32 v{r}, v{r}, v{tmp}")
    half_sum(38, 39)
    a(f"v_mul_f32 v38, {f2u(-1/576)}, v38\nv_mov_b32 v39, v38")
    for r in range(9):
        pkadd(20 + 2*r, 38, 10)
        a("v_pk_mul_f32 v[12:13], v[10:11], v[10:11]" if r == 0 else "v_pk_fma_f32 v[12:13], v[10:11], v[10:11], v[12:13]")
    a("v_add_f32 v42, v12, v13")
    half_sum(42, 41)
    a(f"v_mul_f32 v42, {f2u(1/576)}, v42")
    round2(38, 42, 41)
    a(f"v_mov_b32 v39, v38\nv_add_f32 v42, {f2u(1e-5)}, v42"); round1(42)
    a("v_sqrt_f32 v42, v42"); round1(42)
    a("v_rcp_f32 v10, v42\nv_mov_b32 v11, v10")
    for r in range(9):
        x, y = 20 + 2*r, 21 + 2*r
        pkadd(x, 38); round2(x, y, 41)
        a(f"v_pk_mul_f32 v[{x}:{y}], v[{x}:{y}], v[10:11]")
        a(f"v_cvt_pk_bf16_f32 v{x}, v{x}, v{y}")
        a(f"ds_write_b32 v2, v{x} offset:{XN + 4*r}")
    a(f"s_mov_b32 s46, {SPIN*8}")
    a("L_wqw:")
    a(f"ds_read_b32 v3, v6 offset:{CNT}\ns_waitcnt lgkmcnt(0)")
    a("v_cmp_eq_u32 vcc, 0, v3\ns_cbranch_vccz L_wqok")
    a("s_sleep 1\ns_sub_u32 s46, s46, 1\ns_cbranch_scc0 L_wqw")
    a("L_wqok:")
    STAMP(1)
    for v in range(9): a(f"ds_read_b64 v[{20+2*v}:{21+2*v}], v4 offset:{XN + 32*v}")
    a(f"s_mul_i32 s63, s62, {TAGMUL}\ns_add_u32 s63, s63, {TAGADD}")
    a("s_add_u32 s62, s62, 1\ns_and_b32 s60, s62, 0xff\ns_xor_b32 s61, s60, 0x80")
    a("s_bfe_u32 s35, s30, 0x20010\ns_bfe_u32 s36, s30, 0x50018")
    for ct in range(4):
        for v in range(9):
            r = 64 + (ct*9 + v)*2
            a(f"ds_read_b64_tr_b16 v[{r}:{r+1}], v{44+ct} offset:{2048*v}")
    a("s_waitcnt lgkmcnt(0)")
    for v in range(0, 9, 2):
        for ct in range(4):
            r = 64 + (ct*9 + v)*2; d = 140 + 4*ct
            if v < 8: a(f"v_mfma_f32_16x16x32_bf16 v[{d}:{d+3}], v[{20+2*v}:{23+2*v}], v[{r}:{r+3}], {'0' if v == 0 else f'v[{d}:{d+3}]'}")
            else: a(f"v_mfma_f32_16x16x16_bf16 v[{d}:{d+3}], v[{20+2*v}:{21+2*v}], v[{r}:{r+1}], v[{d}:{d+3}]")
    a("v_mov_b32 v23, s63\nv_mov_b32 v22, 0xffffff00")
    a("v_cndmask_b32 v20, v140, v144, s[58:59]\nv_cndmask_b32 v21, v148, v152, s[58:59]")
    a("v_add_u32 v20, 0x80, v20\nv_add_u32 v21, 0x80, v21\nv_and_or_b32 v20, v20, v22, s60\nv_and_or_b32 v21, v21, v22, s61")
    a("global_store_dwordx2 v43, v[20:21], s[28:29] sc1")
    STAMP(2)
    a(f"s_lshl_b32 s3, s37, 13\ns_and_b32 s46, s32, 15\ns_lshl_b32 s46, s46, 4\ns_add_u32 s3, s3, s46\ns_add_u32 s3, s3, {H1}")
    a("v_lshrrev_b32 v8, 1, v0\nv_lshl_add_u32 v8, v8, 8, s3\nv_and_b32 v9, 1, v0\nv_lshl_add_u32 v8, v9, 3, v8")
    a(f"s_lshl_b32 s3, s31, 5\ns_add_u32 s3, s3, s32\ns_lshl_b32 s3, s3, 9\ns_add_u32 s3, s3, {H1}")
    a("v_lshl_add_u32 v4, v0, 3, s3")
    a("global_store_dwordx2 v4, v[56:57], s[28:29] sc1")
    a(f"s_mul_i32 s44, s31, {H2S}\ns_add_u32 s44, s44, {H2}\ns_lshl_b32 s3, s36, 8\ns_add_u32 s3, s3, s44")
    a("v_lshl_add_u32 v5, v0, 2, s3")
    a("s_cmp_eq_u32 s32, 2\ns_cbranch_scc0 L_c1")
    a("v_mov_b32 v58, -1\nv_mov_b32 v59, -1\ns_add_u32 s3, s44, 1024\nv_lshl_add_u32 v4, v0, 4, s3")
    for k in range(3): a(f"global_store_dwordx4 v4, v[56:59], s[28:29] offset:{1024*(k-1)} sc1")
    a("L_c1:")
    a("s_and_b32 s46, s32, 15\ns_and_b32 s3, s32, 16\ns_lshl1_add_u32 s46, s3, s46\ns_lshl2_add_u32 s46, s46, s44\ns_add_u32 s46, s46, 2304")
    a("v_bfe_u32 v9, v0, 3, 1\nv_lshl_add_u32 v9, v9, 6, s46")
    a("s_lshl_b32 s3, s31, 5\ns_add_u32 s3, s3, s32")
    a(f"s_lshl_b32 s3, s3, 3\ns_add_u32 s3, s3, {FL}\nv_mov_b32 v4, s3\nv_mov_b32 v22, s51")
    a(f"s_bfe_u32 s45, s32, 0x10003\ns_lshl3_add_u32 s44, s37, s45\ns_lshl_b32 s44, s44, 10\ns_add_u32 s44, s44, {QP + 4096}")
    a("v_lshl_add_u32 v44, v0, 4, s44")
    a("s_waitcnt vmcnt(0)")
    a("s_mov_b64 exec, 1\nglobal_store_dwordx2 v4, v[22:23], s[28:29] sc1\ns_mov_b64 exec, -1")
    if qmark:
        a(f"s_mov_b32 s46, {SPIN*8}")
        a("L_qmw:")
        a(f"ds_read_b32 v3, v6 offset:{QM}\ns_waitcnt lgkmcnt(0)")
        a("v_cmp_ne_u32 vcc, 0, v3\ns_cbranch_vccnz L_qmok")
        a("s_sleep 2\ns_sub_u32 s46, s46, 1\ns_cbranch_scc0 L_qmw")
        a("L_qmok:")
    STAMP(3)
    a(f"s_mov_b32 s46, {SPIN}")
    a("L_qpoll:")
    for k in range(4): a(f"global_load_dwordx4 v[{64+4*k}:{67+4*k}], v44, s[28:29] offset:{2048*k - 4096} sc1")
    a("s_waitcnt vmcnt(0)")
    for k in range(16): a(f"v_xor_b32 v{64+k}, s{60 + (k & 1)}, v{64+k}")
    a("v_or_b32 v20, v64, v65")
    for k in range(1, 8): a(f"v_or3_b32 v20, v20, v{64+2*k}, v{65+2*k}")
    a("v_and_b32 v20, 0xff, v20\nv_cmp_ne_u32 vcc, 0, v20\ns_cbranch_vccz L_qgo")
    a(f"s_sub_u32 s46, s46, 1\ns_cbranch_scc0 L_qpoll")
    a("L_qgo:")
    pkadd(64, 68); pkadd(66, 70); pkadd(72, 76); pkadd(74, 78); pkadd(64, 72); pkadd(66, 74)
    a("v_cvt_pk_bf16_f32 v20, v64, v66\nv_cvt_pk_bf16_f32 v21, v65, v67")
    a(f"v_and_b32 v4, 0xc0, v40\nv_add3_u32 v4, v4, v40, s57\nds_write2_b32 v4, v20, v21 offset0:0 offset1:16")
    STAMP(4)
    s2_pre(42)
    sel_masks(0, 12, 42)
    a(f"s_lshl_b32 s3, s31, 8\ns_add_u32 s3, s3, {FL}\nv_lshl_add_u32 v44, v0, 3, s3\nv_and_b32 v45, 7, v0\nv_lshlrev_b32 v45, 8, v45\nv_add_u32 v45, {FL + 16}, v45")
    a("v_cmp_gt_u32 vcc, 32, v0\nv_cndmask_b32 v44, v45, v44, vcc")
    a("v_and_b32 v4, 15, v0\nv_lshlrev_b32 v4, 3, v4")
    def st_wait(name, all_):
        a(f"s_mov_b32 s46, {SPIN*8}")
        a(f"L_{name}w:")
        a(f"ds_read_b64 v[60:61], v4 offset:{STATW}\ns_waitcnt lgkmcnt(0)")
        a(f"v_cmp_eq_u32 vcc, 0, v61\ns_cbranch_vccz L_{name}ok" if all_ else f"v_cmp_ne_u32 vcc, 0, v61\ns_cbranch_vccnz L_{name}ok")
        a(f"s_sleep 2\ns_sub_u32 s46, s46, 1\ns_cbranch_scc0 L_{name}w")
        a(f"L_{name}ok:")
    st_wait("st1", False)
    STAMP(5)
    a("global_load_dwordx2 v[64:65], v44, s[28:29] sc1")
    st_wait("st", True)
    STAMP(6)
    def ticket():
        a("s_mov_b32 s38, 1\ns_xor_b32 s39, s36, s31\ns_and_b32 s39, s39, 1\ns_lshl_b32 s3, s39, 7")
        a("s_cmp_eq_u32 s35, 1\ns_cbranch_scc1 L_notick")
        a("s_atomic_add s38, s[26:27], s3 glc")
        a("L_notick:")
    if not tick_lv: ticket()
    a("v_mov_b32 v62, v60"); oct_red(62, "v_max_f32")
    a("v_sub_f32 v60, v60, v62\nv_exp_f32 v60, v60\nv_mul_f32 v61, v61, v60"); oct_red(61, "v_add_f32")
    a("v_rcp_f32 v59, v61\nv_log_f32 v61, v61\nv_mul_f32 v60, v60, v59\nv_add_f32 v62, v61, v62")
    a(f"s_mov_b32 s46, {SPIN}")
    a("L_fpoll:")
    a("s_waitcnt vmcnt(0)\nv_cmp_ne_u32 vcc, s63, v65\ns_cbranch_vccz L_fgo")
    a("s_sub_u32 s46, s46, 1\ns_cbranch_scc1 L_fgo")
    a("s_sleep 8\nglobal_load_dwordx2 v[64:65], v44, s[28:29] sc1\ns_branch L_fpoll")
    a("L_fgo:")
    a("v_cmp_ne_u32 vcc, s51, v64\ns_mov_b32 s34, vcc_lo")
    if not local: a("s_mov_b32 s34, 1")
    a("s_cmp_eq_u32 s35, 1\ns_cbranch_scc0 L_nof")
    a(f"s_lshl3_add_u32 s3, s31, s36\ns_lshl_b32 s3, s3, 11\ns_add_u32 s3, s3, {H1}\nv_lshl_add_u32 v42, v0, 5, s3")
    a("s_cmp_eq_u32 s36, 8\ns_cbranch_scc0 L_pw")
    a(f"s_mul_i32 s3, s31, {H2S}\ns_add_u32 s3, s3, {ST}\nv_add_u32 v42, s3, v40")
    a("L_pw:")
    a("global_load_dword v58, v42, s[28:29] sc1")
    a("L_nof:")
    a("s_mov_b64 exec, 0x101\ns_cmp_eq_u32 s34, 0\ns_cbranch_scc1 L_stnear")
    a("global_store_dword v9, v62, s[28:29] sc1\ns_branch L_stdone")
    a("L_stnear:\nglobal_store_dword v9, v62, s[28:29]\nL_stdone:\ns_mov_b64 exec, -1")
    a(f"v_lshrrev_b32 v4, 1, v4\nds_write_b32 v4, v60 offset:{CF}")
    a("v_lshrrev_b32 v4, 5, v0\nv_lshlrev_b32 v4, 5, v4")
    a("s_waitcnt lgkmcnt(0)")
    a(f"ds_read_b128 v[48:51], v4 offset:{CF}\nds_read_b128 v[52:55], v4 offset:{CF+16}")
    def lv_wait(name, all_):
        a(f"v_and_b32 v4, 28, v40\ns_mov_b32 s46, {SPIN*8}")
        a(f"L_{name}w:")
        a(f"ds_read_b32 v3, v4 offset:{LV}\ns_waitcnt lgkmcnt(0)")
        a(f"v_cmp_eq_u32 vcc, 0, v3\ns_cbranch_vccz L_{name}ok" if all_ else f"v_cmp_ne_u32 vcc, 0, v3\ns_cbranch_vccnz L_{name}ok")
        a(f"s_sleep 1\ns_sub_u32 s46, s46, 1\ns_cbranch_scc0 L_{name}w")
        a(f"L_{name}ok:")
    if tick_lv:
        lv_wait("lv", False)
        ticket()
    a("s_waitcnt lgkmcnt(0)")
    a("s_mov_b32 s47, 0")
    for th in ntr: a(f"s_cmp_ge_u32 s38, {th}\ns_addc_u32 s47, s47, 0")
    a(f"s_cmp_lt_u32 s38, 9\ns_cselect_b32 s47, {ntrs}, s47")
    NTR = max(len(ntr), ntrs)
    a("s_lshl3_add_u32 s44, s38, 3\ns_sub_u32 s45, s38, 5\ns_mul_i32 s45, s45, 37\ns_lshr_b32 s45, s45, 8\ns_add_u32 s45, s45, s38\ns_sub_u32 s45, s45, 9")
    a("s_cmp_lt_u32 s38, 9\ns_cselect_b32 s44, s44, s45\ns_cmp_lt_u32 s38, 72\ns_cselect_b32 s38, s44, s38\ns_lshl1_add_u32 s38, s38, s39")
    a(f"s_and_b32 s3, s62, 0xfff\ns_lshl4_add_u32 s3, s3, s47")
    a(f"v_mov_b32 v4, 0\nv_mov_b32 v2, s38\nv_mov_b32 v3, s3\nds_write_b64 v4, v[2:3] offset:{ROLE}")
    if NTR:
        a("s_cmp_eq_u32 s35, 1\ns_cbranch_scc1 L_notr\ns_cmp_lt_u32 s38, 144\ns_cbranch_scc0 L_notr\ns_cmp_eq_u32 s47, 0\ns_cbranch_scc1 L_notr")
        lv_wait("lv2", lvall)
        a(f"s_mul_i32 s45, s38, {32*1152}")
        for rb in range(NTR):
            if rb: a(f"s_cmp_gt_u32 s47, {rb}\ns_cbranch_scc0 L_notr")
            for lc in range(9):
                a(f"s_mov_b32 m0, {W + 36864 + 4096*lc + 1024*rb}")
                if rb or lc: a(f"s_add_u32 s45, s45, {128 if lc else 8*1152 - 8*128}")
                a("buffer_load_dwordx4 v7, s[52:55], s45 offen nt lds")
        a("L_notr:")
    a("v_lshlrev_b32 v4, 4, v0")
    a("s_waitcnt lgkmcnt(0)")
    STAMP(7)
    a("s_barrier")
    for w in range(8): a(f"ds_read_b128 v[{64+4*w}:{67+4*w}], v4 offset:{OP + 1024*w}")
    STAMP(8)
    for w in range(8):
        a(f"s_waitcnt lgkmcnt({0 if stamp else 7-w})")
        c = 48 + (w & ~1); sel = "op_sel:[0,1,0]" if w & 1 else "op_sel_hi:[1,0,1]"
        for k in (0, 2):
            if w == 0: a(f"v_pk_mul_f32 v[{60+k}:{61+k}], v[{64+k}:{65+k}], v[48:49] op_sel_hi:[1,0]")
            else: a(f"v_pk_fma_f32 v[{60+k}:{61+k}], v[{64+4*w+k}:{65+4*w+k}], v[{c}:{c+1}], v[{60+k}:{61+k}] {sel}")
    a("s_cmp_eq_u32 s34, 0")
    a("v_cvt_pk_bf16_f32 v60, v60, v61\nv_cvt_pk_bf16_f32 v61, v62, v63")
    a("s_cbranch_scc0 L_pubfar")
    a("global_store_dwordx2 v8, v[60:61], s[28:29]")
    a("L_pubdone:")
    STAMP(9)
    a("s_cmp_eq_u32 s35, 1\ns_cbranch_scc0 L_dyns")
    a("v_lshlrev_b32 v4, 3, v0")
    a("s_barrier")
    for w in range(4): a(f"ds_read2st64_b64 v[{64+4*w}:{67+4*w}], v4 offset0:{(RED + 1024*w)//512} offset1:{(RED + 1024*w + 512)//512}")
    STAMP(10)
    for w in range(4):
        a(f"s_waitcnt lgkmcnt({0 if stamp else 3-w})")
        pkadd(64 + 4*w, 66 + 4*w)
        if w: pkadd(64, 64 + 4*w)
    a("v_cvt_pk_bf16_f32 v64, v64, v65\nglobal_store_dword v5, v64, s[28:29] sc1")
    STAMP(11)
    a("s_branch L_fin" if stamp else "s_endpgm")
    a("L_pubfar:")
    a("global_store_dwordx2 v8, v[60:61], s[28:29] sc1\ns_branch L_pubdone")

    a("L_dyns:")
    a("s_cmp_lt_u32 s38, 144\ns_cbranch_scc1 L_s2\ns_branch L_s3s")
    a("L_dyn:")
    a(f"v_mov_b32 v4, 0\nds_read_b64 v[4:5], v4 offset:{ROLE}\ns_waitcnt lgkmcnt(0)\nv_readfirstlane_b32 s38, v4\nv_readfirstlane_b32 s47, v5")
    a("s_lshr_b32 s62, s47, 4\ns_and_b32 s47, s47, 15")
    a("s_cmp_lt_u32 s38, 144\ns_cbranch_scc0 L_s3w")
    a("L_s2:")
    s2_setup()
    a("s_barrier")
    if fine2: STAMP(1)
    if stamp: a("s_mov_b32 s35, 2")
    a("global_load_ushort v21, v21, s[18:19]")
    def h4_touch():
        a(f"s_mul_i32 s3, s33, {4*18432}\ns_lshl_b32 s44, s38, 7\ns_add_u32 s3, s3, s44\ns_add_u32 s3, s3, {H4}")
        a(f"v_lshrrev_b32 v18, 4, v0\nv_mul_u32_u24 v18, 18432, v18\nv_add_u32 v18, s3, v18")
        if h4pf < 4: a(f"global_load_dword v19, v18, s[28:29] {h4f}")
    if h4pf == 1: h4_touch()
    for n, k in enumerate(ORDER):
        if 4 <= k < 4 + NTR:
            a(f"s_cmp_gt_u32 s47, {k-4}\ns_cbranch_scc1 L_trd{k}"); s2_dma(k, 6, 7); a(f"L_trd{k}:")
            continue
        if stagger and n == 6 and EARLY2 < 6:
            if h4pf == 2: h4_touch()
            if fine2: STAMP(2)
            a("s_barrier")
        s2_dma(k, 6, 7)
    if fine2:
        STAMP(3); a("s_waitcnt vmcnt(6)"); STAMP(4); a("s_waitcnt vmcnt(2)"); STAMP(5)
    a("v_bfe_u32 v4, v0, 4, 1\nv_and_b32 v5, 15, v0\nv_lshl_add_u32 v5, v5, 1, v4")
    a("s_lshl_b32 s3, s33, 8\nv_and_b32 v6, 24, v5\nv_lshl_add_u32 v7, v6, 3, s3\nv_and_b32 v6, 3, v5\nv_lshl_add_u32 v7, v6, 4, v7")
    a("v_and_b32 v6, 4, v5\nv_lshl_add_u32 v7, v6, 1, v7")
    a("v_lshrrev_b32 v4, 4, v5\nv_mul_u32_u24 v4, 1152, v4\nv_and_b32 v6, 8, v5\nv_lshl_add_u32 v4, v6, 3, v4\nv_and_b32 v6, 7, v5\nv_lshl_add_u32 v4, v6, 2, v4")
    a(f"s_lshl_b32 s3, s33, 7\nv_add_u32 v4, s3, v4\nds_read_b32 v50, v4 offset:{XR}\nds_read_b32 v51, v4 offset:{XR + 32}")
    for k in range(4): a(f"v_and_b32 v{12+k}, 0x3f803f80, v{12+k}")
    a("v_lshrrev_b32 v5, 4, v0\nv_mul_u32_u24 v8, 80, v0")
    a("v_bfe_u32 v4, v0, 3, 1\nv_mul_u32_u24 v20, 80, v4")
    a(f"s_lshl_b32 s3, s33, 8\ns_add_u32 s3, s3, {Y}\nv_lshl_add_u32 v9, v4, 7, s3\nv_lshl_add_u32 v9, v5, 4, v9")
    a(f"v_and_b32 v4, 3, v0\nv_cmp_eq_u32 vcc, 1, v4\nv_mov_b32 v6, {ONES}\nv_cndmask_b32 v9, v9, v6, vcc")
    a("v_lshl_add_u32 v4, v5, 2, v4\nv_bfe_u32 v6, v0, 2, 2\nv_lshl_add_u32 v4, v6, 4, v4")
    a("s_lshl_b32 s3, s33, 3\nv_mul_u32_u24 v10, 80, v4\nv_add_u32 v10, s3, v10\nv_add_u32 v11, s3, v20")
    a("s_mov_b32 s60, 1\ns_movk_i32 s61, 0x100")
    if h4pf >= 4: h4_touch()
    a(f"s_lshl_b32 s3, s33, 8\ns_add_u32 s3, s3, {H2}")
    a(f"v_mul_u32_u24 v4, {H2S}, v5\nv_and_b32 v24, 15, v0\nv_lshl_add_u32 v24, v24, 4, s3\nv_add_u32 v24, v24, v4\nv_add_u32 v25, {4*H2S}, v24")
    a(f"s_sub_u32 s39, s33, 1\ns_min_u32 s39, s39, 2")
    a(f"s_mul_i32 s3, s39, {12*18432}\ns_lshl_b32 s44, s38, 7\ns_add_u32 s3, s3, s44\ns_add_u32 s3, s3, {H4}")
    a("v_mul_u32_u24 v4, 18432, v5\nv_and_b32 v28, 15, v0\nv_lshl_add_u32 v28, v28, 3, s3\nv_add_u32 v28, v28, v4")
    a(f"v_add_u32 v29, {4*18432}, v28\nv_add_u32 v30, {8*18432}, v28")
    a("v_and_b32 v4, 16, v0\nv_cmp_ne_u32 s[58:59], 0, v4")
    a("v_lshrrev_b32 v4, 2, v0\nv_lshl_add_u32 v4, v4, 6, s50\nv_and_b32 v36, 3, v0\nv_lshl_add_u32 v4, v36, 3, v4")
    a("v_bfe_u32 v36, v0, 4, 1\nv_lshl_add_u32 v36, v36, 5, v4\nv_xor_b32 v37, 32, v36")
    a(f"s_mul_i32 s3, s39, {3*4096}\ns_add_u32 s3, s3, {W+36864}"); tr_addr128(0, 32, 38, 3)
    if b5early:
        a("s_waitcnt vmcnt(2)")
        a("s_barrier")

        a("s_sub_u32 s39, s33, 1\ns_cmp_lt_u32 s39, 3\ns_cbranch_scc0 L_s2nw2")
        for ln in range(3):
            for ct in range(4):
                for eh in range(2):
                    r = 80 + 16*ln + 4*ct + 2*eh
                    a(f"ds_read_b64_tr_b16 v[{r}:{r+1}], v{32+ct} offset:{4096*ln + 2048*eh}")
        a("L_s2nw2:")
    a("s_waitcnt vmcnt(0) lgkmcnt(0)")
    STAMP(10)
    for k in range(2): a(f"global_load_dwordx4 v[{40+4*k}:{43+4*k}], v{24+k}, s[28:29] sc1")
    for ct in range(2):
        for vl in range(4):
            r = 64 + ct*8 + 2*vl
            a(f"ds_read_b64_tr_b16 v[{r}:{r+1}], v{36+ct} offset:{1024*vl}")
    a("v_lshlrev_b32 v21, 16, v21\nv_lshlrev_b32 v48, 16, v50\nv_lshlrev_b32 v49, 16, v51\nv_and_b32 v50, 0xffff0000, v50\nv_and_b32 v51, 0xffff0000, v51")
    if not b5early:
        a("s_barrier")

        a("s_sub_u32 s39, s33, 1\ns_cmp_lt_u32 s39, 3\ns_cbranch_scc0 L_s2nw2")
        for ln in range(3):
            for ct in range(4):
                for eh in range(2):
                    r = 80 + 16*ln + 4*ct + 2*eh
                    a(f"ds_read_b64_tr_b16 v[{r}:{r+1}], v{32+ct} offset:{4096*ln + 2048*eh}")
        a("L_s2nw2:")
    c0 = -2 * LOG2E * 0.7978845608028654
    a(f"v_mov_b32 v34, {f2u(c0)}\nv_mov_b32 v35, {f2u(c0*0.044715)}\nv_mov_b32 v36, {f2u(1 + 1e-5)}\nv_mov_b32 v37, {f2u(1e-10)}\nv_mov_b32 v38, {f2u(1/576)}\nv_mov_b32 v39, v38")
    a("v_mov_b32 v33, 0xfffff000\ns_xor_b32 s63, s62, 0x880")
    a(f"s_mov_b32 s46, {SPIN}")
    a("L_s2poll:")
    a("s_waitcnt vmcnt(1)\nv_mfma_f32_16x16x32_bf16 v[56:59], v[12:15], v[40:43], v[48:51]")
    a("s_waitcnt vmcnt(0)\nv_mfma_f32_16x16x32_bf16 v[56:59], v[12:15], v[44:47], v[56:59]")
    a("v_cmp_u_f32 vcc, v56, v56")
    a("v_cvt_pk_bf16_f32 v56, v56, v57\nv_cvt_pk_bf16_f32 v57, v58, v59")
    a("s_cbranch_vccnz L_s2chk")
    a("L_s2go:")
    STAMP(11)
    a(f"ds_write_b64 v7, v[56:57] offset:{Y}")
    a("ds_read_b128 v[128:131], v9\nds_read_b128 v[132:135], v9 offset:64")
    if h4pf == 4: a(f"global_load_dword v19, v18, s[28:29] {h4f}")
    a("s_waitcnt lgkmcnt(0)")
    for ct in range(3):
        for u in range(2):
            d = 136 + 4*ct; r = 64 + ct*8 + 4*u if ct < 2 else 128 + 4*u
            a(f"v_mfma_f32_16x16x32_bf16 v[{d}:{d+3}], v[{128+4*u}:{131+4*u}], v[{r}:{r+3}], {'0' if u == 0 else f'v[{d}:{d+3}]'}")
    a("s_cmp_lt_u32 s39, 3")
    a("v_cndmask_b32 v136, v136, v140, s[58:59]\nv_cndmask_b32 v137, v137, v141, s[58:59]")
    a(f"ds_write_b64 v10, v[136:137] offset:{T}\ns_mov_b64 exec, s[60:61]\nds_write_b64 v11, v[144:145] offset:{SS}\ns_mov_b64 exec, -1")
    if fine: STAMP(1)
    a("s_waitcnt lgkmcnt(0)\ns_barrier")
    a("s_cbranch_scc0 L_s2x" if gf else "s_cbranch_scc0 L_fin")
    if fine: STAMP(2)
    for k in range(4): a(f"ds_read_b128 v[{60+4*k}:{63+4*k}], v20 offset:{SS + 16*k}")
    a(f"ds_read_b64 v[76:77], v20 offset:{SS + 64}")
    for k in range(4): a(f"ds_read_b128 v[{128+4*k}:{131+4*k}], v8 offset:{T + 16*k}")
    a(f"ds_read_b64 v[144:145], v8 offset:{T + 64}")
    for k in range(4):
        a(f"s_waitcnt lgkmcnt({0 if fine else 9-k})"); pkadd(60 + 4*k, 62 + 4*k)
        if k == 1: pkadd(60, 64)
    a(f"s_waitcnt lgkmcnt({0 if fine else 5})")
    pkadd(68, 72); pkadd(60, 76); pkadd(60, 68)
    a("v_pk_mul_f32 v[60:61], v[60:61], v[38:39]\nv_fma_f32 v60, -v61, v61, v60\nv_max_f32 v60, 0, v60")
    a("v_fma_f32 v62, v60, v36, v37\nv_rsq_f32 v62, v62")
    a("s_waitcnt lgkmcnt(0)")
    for k in range(4): pkadd(128 + 4*k, 130 + 4*k)
    pkadd(128, 132); pkadd(136, 140); pkadd(128, 144); pkadd(128, 136)
    a("v_fma_f32 v128, -v61, v129, v128\nv_fma_f32 v128, v62, v128, v21")
    a("v_mul_f32 v129, v128, v128\nv_fma_f32 v129, v129, v35, v34\nv_mul_f32 v129, v128, v129")
    a("v_exp_f32 v129, v129\nv_add_f32 v129, 1.0, v129\nv_rcp_f32 v129, v129\nv_mul_f32 v128, v128, v129")
    a(f"v_mov_b32_dpp v129, v128 row_shl:1 {DPPF}")
    a("v_cvt_pk_bf16_f32 v128, v128, v129")
    for r in (1, 2, 3): a(f"v_mov_b32_dpp v{128+r}, v128 row_shl:{2*r} {DPPF}")
    if fine: STAMP(3)
    def fold(ln):
        b = 80 + 16*ln
        a(f"v_permlane16_swap_b32 v{b+8}, v{b+12}\nv_permlane16_swap_b32 v{b}, v{b+4}\nv_and_or_b32 v{b+1}, v{b+8}, v33, s63\nv_and_or_b32 v{b}, v{b}, v33, s62")
        a(f"global_store_dwordx2 v{28 + ln}, v[{b}:{b+1}], s[28:29] sc1")
    for t in range(12):
        a(f"v_mfma_f32_16x16x32_bf16 v[{80+4*t}:{83+4*t}], v[128:131], v[{80+4*t}:{83+4*t}], 0")
    for ln in range(3): fold(ln)
    STAMP(12)
    a("s_branch L_fin" if stamp else "s_endpgm")
    if gf:
        a(f"L_s2x:\ns_cmp_eq_u32 s33, 4\ns_cbranch_scc0 L_fin\ns_cmp_lt_u32 s38, {egate}\ns_cbranch_scc0 L_fin")
        a(f"s_lshl_b32 s3, s38, 7\ns_add_u32 s3, s3, {GF}\nv_lshl_add_u32 v4, v0, 3, s3\nv_mov_b32 v2, s62\nv_mov_b32 v3, s63\ns_mov_b64 exec, 0xffff")
        if gf > 1: a(f"s_sleep {gf-1}")
        a("global_store_dwordx2 v4, v[2:3], s[28:29] sc1\ns_mov_b64 exec, -1\ns_branch L_fin")
    a("L_s2chk:")
    for k in range(2):
        r = 40 + 4*k
        a(f"v_max3_u32 v31, v{r}, v{r+1}, v{r+2}\nv_max_u32 v31, v31, v{r+3}\nv_cmp_eq_u32 s[{94+2*k}:{95+2*k}], -1, v31")
    a("s_or_b64 s[44:45], s[94:95], s[96:97]\ns_cbranch_scc0 L_s2go")
    a("s_sub_u32 s46, s46, 1\ns_cbranch_scc1 L_s2go")
    if s2sleep: a(f"s_sleep {s2sleep}")
    for k in range(2):
        a(f"s_mov_b64 exec, s[{94+2*k}:{95+2*k}]\ns_cbranch_execz L_s2r{k}")
        a(f"global_load_dwordx4 v[{40+4*k}:{43+4*k}], v{24+k}, s[28:29] sc1")
        a(f"L_s2r{k}:")
    a("s_mov_b64 exec, -1\ns_waitcnt vmcnt(0)\ns_branch L_s2poll")

    def red8(b):
        a(f"v_permlane32_swap_b32 v{b}, v{b+2}\nv_permlane32_swap_b32 v{b+1}, v{b+3}")
        pkadd(b, b + 2)
        a(f"v_permlane16_swap_b32 v{b}, v{b+1}\nv_add_f32 v{b}, v{b}, v{b+1}")
        a(f"v_add_f32_dpp v{b}, v{b}, v{b} row_ror:8 {DPPF}")
    a("L_s3s:")
    if stamp: a("s_mov_b32 s35, 0")
    a("s_sub_u32 s38, s38, 144\ns_cmp_ge_u32 s38, 36\ns_cbranch_scc1 L_fin")
    if stamp: a("s_mov_b32 s35, 3")
    a("s_lshr_b32 s3, s38, 2\ns_lshl_b32 s3, s3, 6\ns_and_b32 s44, s38, 1\ns_lshl_b32 s44, s44, 5\ns_add_u32 s3, s3, s44")
    a("v_and_b32 v4, 7, v0\nv_lshl_add_u32 v6, v4, 1, s3\nv_and_b32 v5, 16, v0\nv_add_u32 v6, v5, v6\nv_lshrrev_b32 v5, 5, v0\nv_add_u32 v6, v6, v5")
    a("v_lshlrev_b32 v6, 1, v6")
    a("s_bfe_u32 s3, s38, 0x10001\ns_mul_i32 s3, s3, 1152\nv_add_u32 v7, s3, v6")
    a("global_load_ushort v20, v7, s[4:5]\nglobal_load_ushort v21, v6, s[22:23]")
    a(f"s_lshl_b32 s3, s38, 6\ns_add_u32 s3, s3, {H2}")
    a(f"v_lshrrev_b32 v5, 3, v0\nv_mul_u32_u24 v5, {H2S}, v5\nv_lshl_add_u32 v5, v4, 3, v5\nv_add_u32 v5, s3, v5")
    a(f"s_mov_b32 s46, {SPIN}")
    a("L_s3hpoll:")
    a("global_load_dwordx2 v[28:29], v5, s[28:29] sc1\ns_waitcnt vmcnt(0)")
    a("v_max_u32 v8, v28, v29")
    a("v_cmp_eq_u32 vcc, -1, v8\ns_cbranch_vccz L_s3hgo")
    a(f"s_sleep {hsleep}\ns_sub_u32 s46, s46, 1\ns_cbranch_scc0 L_s3hpoll")
    a("L_s3hgo:")
    STAMP(10)
    a("v_lshlrev_b32 v24, 16, v28\nv_and_b32 v25, 0xffff0000, v28\nv_lshlrev_b32 v26, 16, v29\nv_and_b32 v27, 0xffff0000, v29")
    red8(24)
    a("v_lshlrev_b32 v20, 16, v20\nv_lshlrev_b32 v21, 16, v21\nv_add_f32 v20, v20, v24"); round1(20)
    a("v_add_f32 v20, v20, v21")
    a("s_cmp_eq_u32 s38, 0\ns_cbranch_scc0 L_noep")
    a(f"v_mov_b32 v41, s62\nv_mov_b32 v42, {EP}\ns_mov_b64 exec, 1")
    a("global_store_dword v42, v41, s[28:29] sc1\ns_mov_b64 exec, -1")
    a("L_noep:")
    a("s_and_b32 s62, s62, 0xfff")
    if egate:
        a(f"s_movk_i32 s3, {GF}" if gf else f"s_mul_i32 s3, s38, 18432\ns_add_u32 s3, s3, {H4}")
        a(f"v_lshl_add_u32 v5, v0, 7, s3\ns_mov_b32 s46, {SPIN}\ns_mov_b64 exec, {(1 << egate) - 1}")
        a("L_eg:")
        a("global_load_dwordx2 v[24:25], v5, s[28:29] sc1\ns_waitcnt vmcnt(0)")
        a("v_xor_b32 v25, 0x880, v25\nv_xor_b32 v24, s62, v24\nv_xor_b32 v25, s62, v25\nv_or_b32 v24, v24, v25\nv_lshlrev_b32 v24, 20, v24")
        a("v_cmp_eq_u32 vcc, 0, v24\ns_cbranch_vccnz L_egok\ns_sub_u32 s46, s46, 1\ns_cbranch_scc0 L_eg")
        a("L_egok:\ns_mov_b64 exec, -1")
    a("s_branch L_s3c")
    a("L_s3w:")
    if stamp: a("s_mov_b32 s35, 0")
    a("s_sub_u32 s38, s38, 144\ns_cmp_ge_u32 s38, 36\ns_cbranch_scc1 L_fin")
    if stamp: a("s_mov_b32 s35, 3")
    a("v_mov_b32 v7, 0")
    a("L_s3c:")
    a("s_xor_b32 s63, s62, 0x880")
    a(f"s_mul_i32 s3, s38, 18432\ns_lshl_b32 s44, s33, 11\ns_add_u32 s3, s3, s44\ns_add_u32 s3, s3, {H4}")
    a("v_lshl_add_u32 v1, v0, 4, s3")
    a("v_lshlrev_b32 v2, 2, v0\ns_lshl_b32 s3, s33, 8\nv_add_u32 v3, s3, v2")
    a(f"s_mov_b32 s46, {SPIN}")
    if h4pf == 3:
        a("s_cmp_eq_u32 s33, 0\ns_cbranch_scc1 L_nopf3")
        a(f"s_mul_i32 s3, s38, 18432\ns_sub_u32 s44, s33, 1\ns_mul_i32 s44, s44, 2304\ns_add_u32 s3, s3, s44\ns_add_u32 s3, s3, {H4}")
        a(f"v_min_u32 v4, 17, v0\nv_lshl_add_u32 v4, v4, 7, s3\nglobal_load_dword v19, v4, s[28:29]\ns_waitcnt vmcnt(0)\nglobal_load_dword v19, v4, s[28:29] sc1 nt")
        a("L_nopf3:")
    a("s_barrier")
    if s3d: a(f"s_sleep {s3d}")
    ppoll("h4", [24, 28], [f"global_load_dwordx4 v[{24+4*k}:{27+4*k}], v1, s[28:29] offset:{1024*k} sc1" for k in range(2)], p3, p3s, 8, tagged=32)
    pkadd(32, 36); pkadd(34, 38)
    red8(32)
    a("L_s3go:")
    a(f"ds_write_b32 v3, v32 offset:{FIN}")
    a("s_cmp_eq_u32 s33, 0\ns_waitcnt lgkmcnt(0)\ns_barrier")
    a("s_cbranch_scc0 L_fin")
    for k in range(4): a(f"ds_read2st64_b32 v[{40+2*k}:{41+2*k}], v2 offset0:{FIN//256 + 2*k} offset1:{FIN//256 + 2*k + 1}")
    a(f"ds_read_b32 v48, v2 offset:{FIN + 2048}")
    STAMP(11)
    a("s_mov_b32 exec_lo, 0x00ff00ff\ns_mov_b32 exec_hi, 0x00ff00ff")
    a("s_waitcnt lgkmcnt(0)")
    pkadd(40, 42); pkadd(44, 46); a("v_add_f32 v48, v48, v20"); pkadd(40, 44)
    a("v_add_f32 v40, v40, v41\nv_add_f32 v40, v40, v48\nv_cvt_pk_bf16_f32 v40, v40, v40")
    a(f"global_store_short v7, v40, s[24:25] {outf}")
    a("L_fin:")
    if stamp:
        if isinstance(swave, str): a(f"s_cmp_eq_u32 s35, 2\ns_cselect_b32 s3, {swave[4:] or 1}, 0\ns_cmp_eq_u32 s33, s3\ns_cbranch_scc0 L_exit2")
        else: a(f"s_cmp_eq_u32 s33, {swave}\ns_cbranch_scc0 L_exit2")
        a("s_memrealtime s[90:91]\ns_waitcnt vmcnt(0)\ns_memrealtime s[92:93]")
        a("s_mov_b64 exec, 1\ns_waitcnt lgkmcnt(0)")
        a(f"s_lshl_b32 s3, s2, 7\ns_add_u32 s3, s3, {STAMP_OFF}\nv_mov_b32 v1, s3")
        a("v_mov_b32 v2, s35\nv_mov_b32 v3, s38\nglobal_store_dwordx2 v1, v[2:3], s[28:29] offset:120")
        for i in range(15):
            a(f"v_mov_b32 v2, s{64+2*i}\nv_mov_b32 v3, s{65+2*i}\nglobal_store_dwordx2 v1, v[2:3], s[28:29] offset:{8*i}")
    a("L_exit2:\ns_endpgm")
    if stamp:
        for key, lo in (("s_load_dword s62, s[28:29], 0", 1), ("s_add_u32 s8, s8, s3", 4)):
            i = L.index(key)
            L[i:i] = [f"s_mov_b64 s[{64+2*k}:{65+2*k}], 0" for k in range(lo, 15)]
    body = hazard.run(L)
    tab = []
    for p in table:
        start = 0
        for (role, ridx, n) in p:
            assert NMAX - NSKIP <= n <= NMAX
            start += n
            tab.append(start | (n << 8) | (role << 16) | (ridx << 24))
        assert start == 128, start
    out = f"""; Fused decode block: pre-LN -> q projection -> sliding-window GQA attention -> wo -> residual -> LN,LN -> MLP -> residual.
; One persistent launch, 256 workgroups x 9 waves (generated by a Python script from hand-written sequences).
; @launch grid=(256,1,1) block=(576,1,1) lds={LDS_SIZE}
.amdgcn_target "amdgcn-amd-amdhsa--gfx950"
.text
.globl {NAME}_kernel
.type L_front,@object
L_front:
.fill 768, 4, 0
.p2align 8
.type {NAME}_kernel,@function
{NAME}_kernel:
""" + "\n".join(body) + f"""
.p2align 7
.type L_table,@object
L_table:
""" + "\n".join(f".long {t:#x}" for t in tab) + f"""
.p2align 8
L_codeend:
.section .rodata,"a"
.p2align 6
.amdhsa_kernel {NAME}_kernel
  .amdhsa_next_free_vgpr 168
  .amdhsa_next_free_sgpr 102
  .amdhsa_accum_offset 168
  .amdhsa_group_segment_fixed_size 0
  .amdhsa_kernarg_size 104
  .amdhsa_user_sgpr_count 2
  .amdhsa_user_sgpr_kernarg_segment_ptr 1
  .amdhsa_system_sgpr_workgroup_id_x 1
  .amdhsa_float_denorm_mode_32 3
.end_amdhsa_kernel
"""
    return out
def gen(**kw):
    import subprocess, re
    lines = 100
    for _ in range(3):
        txt = gen1(lines, **kw)
        open("_g.s", "w").write(txt)
        subprocess.run(["clang", "-x", "assembler", "-target", "amdgcn-amd-amdhsa", "-mcpu=gfx950", "-c", "_g.s", "-o", "_g.o"], check=True)
        sym = subprocess.run(["llvm-objdump", "-t", "_g.o"], capture_output=True, text=True).stdout
        at = lambda n: int(re.search(r"^([0-9a-f]+) .*" + n + "$", sym, re.M).group(1), 16)
        end = at("L_codeend") - at("_kernel")
        assert at("L_end256") - at("_kernel") <= 256
        if end // 128 == lines: return txt
        lines = end // 128
    raise RuntimeError("size did not converge")
if __name__ == "__main__":
    open("k.s", "w").write(gen())
    open("ks.s", "w").write(gen(stamp=True))
```

```python
import sys, struct
import hazard
NAME = "sequential_preLN__sliding_block_cached__mixer_channel_mlp__decode"
def f2u(x): return struct.unpack("<I", struct.pack("<f", x))[0]

EP, FL, H2, H1, H4, QP = 0x0, 0x1000, 0x4000, 0x10000, 0x30000, 0xe0000
GF, CFL, FLF, FAR = 0x2000, 0x2400, 0xc000, 0x100000
NFAIL = 4
H2S = 3072
ST = H2 + 2304
TK = H2 + 2560
TAGMUL, TAGADD = 0x9E3779B1, 0x7F4A7C15
STAMP_OFF = 512 << 20
ROLE, LV, QM, XR = 3600, 2976, 3008, 20480
XN, Q, STATW, CNT, CF, ONES, SS, DUMP, Y, T, FIN, OP, RED, WQ, W = (
    0, 2304, 2816, 2944, 3072, 3200, 3328, 3584, 3840, 6144, 6144, 12288, 20480, 24576, 45056)
LDS_SIZE = W + 73728
NMAX = 18
WOF = 96
KR, VR = 24, 96
LOG2E = 1.4426950408889634
SPIN = 1 << 15

def mk_table(a=(13, 13), b=(17,)*6, last=(13, 14, 14, 17, 17, 17, 18, 18)):
    t = []; k = 0
    for q in range(3):
        row = [(1, 2*q, a[0]), (1, 2*q+1, a[1])]
        for n in b: row.append((0, k & 1, n)); k += 1
        t.append(row)
    row = [(1, 6+i, last[i]) for i in range(3)]
    for n in last[3:]: row.append((0, k & 1, n)); k += 1
    t.append(row)
    return t
DEFAULT_TABLE = mk_table(last=(13, 13, 13, 18, 18, 18, 18, 17))

def gen1(code_lines, D=5, J=9, EARLY2=0, stamp=False, table=DEFAULT_TABLE, local=True, swave=0, fine=False, noround=False, stagger=True, fine2=False, s2sleep=0, s1sleep=0, w1a='', kvf='nt', masked=True, tick_lv=False, lvpos=0, p3=1, p3s=0, p2=0, p2s=0, p1=0, ntr=(0, 0, 0), ntrs=4, lvall=True, pollearly=False, latebe=False, trth=40, wb=0, wbs=16, outf='', s3d=0, gate=None, hsleep=6, egate=8, dpat=(0,), xpat=(1,), NSKIP=5, pw2=False, ra=3, rb=5, wx=0, h4pf=2, h4f='', qmark=0, b5early=True, gf=1, loct=3, p3f=True, tlb=0, tight=False):
    L = []
    def a(s):
        for x in s.split("\n"):
            x = x.strip()
            if x: L.append(x)
    def STAMP(i):
        if stamp: a(f"s_memrealtime s[{64+2*i}:{65+2*i}]")
    DPPF = "row_mask:0xf bank_mask:0xf"
    def row_sum(r, op="v_add_f32"):
        for k in (8, 4, 2, 1): a(f"{op}_dpp v{r}, v{r}, v{r} row_ror:{k} {DPPF}")
    def oct_red(r, op):
        a(f"{op}_dpp v{r}, v{r}, v{r} quad_perm:[1,0,3,2] {DPPF}")
        a(f"{op}_dpp v{r}, v{r}, v{r} quad_perm:[2,3,0,1] {DPPF}")
        a(f"{op}_dpp v{r}, v{r}, v{r} row_half_mirror {DPPF}")
    def round2(x, y, tmp):
        a(f"v_cvt_pk_bf16_f32 v{tmp}, v{x}, v{y}")
        a(f"v_lshlrev_b32 v{x}, 16, v{tmp}")
        a(f"v_and_b32 v{y}, 0xffff0000, v{tmp}")
    def round1(x):
        a(f"v_cvt_pk_bf16_f32 v{x}, v{x}, v{x}")
        a(f"v_lshlrev_b32 v{x}, 16, v{x}")
    def pkadd(x, y, d=None):
        d = x if d is None else d
        a(f"v_pk_add_f32 v[{d}:{d+1}], v[{x}:{x+1}], v[{y}:{y+1}]")
    def srd(base, nbytes, dst=40):
        a(f"s_mov_b32 s{dst}, s{base}\ns_mov_b32 s{dst+1}, s{base+1}\ns_mov_b32 s{dst+2}, {nbytes}\ns_mov_b32 s{dst+3}, 0x20000")
    def sel_masks(lane, dst, tmp):
        a(f"v_and_b32 v{tmp}, 1, v{lane}")
        a(f"v_lshlrev_b32 v{tmp}, 4, v{tmp}")
        a(f"s_mov_b32 s47, 0xffff\nv_lshlrev_b32 v{tmp}, v{tmp}, s47")
        a(f"v_bfe_u32 v{tmp+1}, v{lane}, 1, 2")
        for k in range(4):
            a(f"v_cmp_eq_u32 vcc, {k}, v{tmp+1}")
            a(f"v_cndmask_b32 v{dst+k}, 0, v{tmp}, vcc")
    def tr_addr128(lane, dst, tmp, base_s, perm=(0, 2, 1, 3)):
        a(f"v_lshrrev_b32 v{tmp}, 2, v{lane}")
        a(f"v_bfe_u32 v{tmp+1}, v{lane}, 3, 2")
        a(f"v_lshl_add_u32 v{tmp}, v{tmp}, 7, s{base_s}")
        a(f"v_lshl_add_u32 v{tmp}, v{tmp+1}, 5, v{tmp}")
        a(f"v_and_b32 v{tmp+1}, 3, v{lane}")
        a(f"v_lshl_add_u32 v{dst}, v{tmp+1}, 3, v{tmp}")
        for ct in (1, 2, 3): a(f"v_xor_b32 v{dst+ct}, {perm[ct]*32}, v{dst}")
    def dma_chunk128(lane, dst, tmp):
        a(f"v_lshrrev_b32 v{tmp}, 3, v{lane}")
        a(f"v_and_b32 v{dst}, 6, v{tmp}")
        a(f"v_xor_b32 v{dst}, v{dst}, v{lane}")
        a(f"v_and_b32 v{dst}, 7, v{dst}")
        a(f"v_lshlrev_b32 v{dst}, 4, v{dst}")
    def w1_voff(lane, dst, tmp):
        a(f"v_lshrrev_b32 v{dst}, 3, v{lane}")
        a(f"v_and_b32 v{tmp+1}, 2, v{dst}")
        a(f"v_bfe_u32 v{tmp}, v{lane}, 2, 1")
        a(f"v_lshl_add_u32 v{dst}, v{tmp}, 4, v{dst}")
        a(f"v_mul_u32_u24 v{dst}, 9216, v{dst}")
        a(f"v_xor_b32 v{tmp}, v{tmp+1}, v{lane}")
        a(f"v_and_b32 v{tmp}, 3, v{tmp}")
        a(f"v_lshl_add_u32 v{dst}, v{tmp}, 4, v{dst}")
    def w2_voff(lane, dst, tmp):
        dma_chunk128(lane, dst, tmp)
        a(f"v_mul_u32_u24 v{tmp}, 1152, v{tmp}")
        a(f"v_add_u32 v{dst}, v{dst}, v{tmp}")
    def s2_dma(k, v1off, v2off):
        if k < 4:
            if k == 2: a(f"s_xor_b32 s51, s51, 2048\ns_add_u32 s48, s48, s56")
            a(f"s_add_u32 m0, s51, {(k & 1)*1024}\ns_add_u32 s45, s48, {(k & 1)*8*9216}")
            a(f"buffer_load_dwordx4 v{v1off}, s[40:43], s45 offen {w1a if k < 2 else 'nt'} lds")
        else:
            a(f"s_add_u32 m0, s50, {36864 + (k-4)*1024}")
            a(f"s_add_u32 s45, s49, {(k-4)*8*1152}")
            a(f"buffer_load_dwordx4 v{v2off}, s[52:55], s45 offen nt lds")
    def s2_setup():
        a(f"s_mul_i32 s48, s33, {64*9216}\ns_lshl_b32 s45, s38, 6\ns_add_u32 s48, s48, s45\ns_add_u32 s18, s18, s45\ns_addc_u32 s19, s19, 0")
        a(f"s_mul_i32 s49, s38, {32*1152}\ns_lshl_b32 s45, s33, 7\ns_add_u32 s49, s49, s45")
        a(f"s_bitcmp1_b32 s38, 0\ns_cselect_b32 s44, {32*9216}, 0\ns_cselect_b32 s51, 2048, 0\ns_add_u32 s48, s48, s44\ns_add_u32 s51, s51, s50")
        a(f"s_lshl_b32 s44, s44, 1\ns_sub_u32 s56, {32*9216}, s44")
    def s2_pre(t0):
        srd(16, 576*4608*2, 40); srd(20, 4608*576*2, 52)
        a(f"s_lshl_b32 s50, s33, 12\ns_add_u32 s50, s50, {W}")
        w1_voff(0, 6, t0); w2_voff(0, 7, t0)
        a(f"v_bfe_u32 v{t0}, v0, 2, 1\nv_and_b32 v21, 3, v0\nv_lshl_add_u32 v21, v{t0}, 4, v21\nv_lshrrev_b32 v{t0}, 4, v0\nv_lshl_add_u32 v21, v{t0}, 2, v21\nv_lshlrev_b32 v21, 1, v21")

    def ppoll(name, regs, loads, depth, slp, tmp, init=True, tagged=None):
        if init:
            for r in regs:
                for k in range(4): a(f"v_mov_b32 v{r+k}, -1")
            for k in range(len(regs)): a(f"s_mov_b64 s[{94+2*k}:{95+2*k}], -1")
        a(f"L_{name}p:")
        for k, r in enumerate(regs):
            a(f"s_mov_b64 exec, s[{94+2*k}:{95+2*k}]\ns_cbranch_execz L_{name}n{k}")
            a(loads[k])
            a(f"L_{name}n{k}:")
        a("s_mov_b64 exec, -1")
        if slp: a(f"s_sleep {slp}")
        a(f"s_waitcnt vmcnt({len(regs)*(depth-1)})")
        a(f"s_sub_u32 s46, s46, 1\ns_cbranch_scc1 L_{name}t")
        a(f"L_{name}c:")
        if tagged:
            for k, r in enumerate(regs):
                y = tagged + 4*k
                for j in range(4): a(f"v_xor_b32 v{y+j}, s{62 + (j & 1)}, v{r+j}")
                a(f"v_or3_b32 v{tmp+k}, v{y}, v{y+1}, v{y+2}\nv_or_b32 v{tmp+k}, v{tmp+k}, v{y+3}\nv_lshlrev_b32 v{tmp+k}, 20, v{tmp+k}")
                a(f"v_cmp_ne_u32 s[{94+2*k}:{95+2*k}], 0, v{tmp+k}")
        else:
            for k, r in enumerate(regs):
                a(f"v_max3_u32 v{tmp+k}, v{r}, v{r+1}, v{r+2}")
            for k, r in enumerate(regs):
                a(f"v_max_u32 v{tmp+k}, v{tmp+k}, v{r+3}")
            for k, r in enumerate(regs):
                a(f"v_cmp_eq_u32 s[{94+2*k}:{95+2*k}], -1, v{tmp+k}")
        a("s_or_b64 s[44:45], s[94:95], s[96:97]")
        for k in range(2, len(regs)): a(f"s_or_b64 s[44:45], s[44:45], s[{94+2*k}:{95+2*k}]")
        a(f"s_cbranch_scc1 L_{name}p")
        a(f"L_{name}t:")

    ends = []
    for p in table:
        e = 0; w = 0
        for i, (_, _, n) in enumerate(p):
            e += n; w |= e << (8 * i)
        ends.append(w)
    assert ends[0] == ends[1] == ends[2]
    a("s_load_dwordx16 s[4:19], s[0:1], 0")
    STAMP(0)
    a("v_readfirstlane_b32 s33, v0")
    a("s_cmpk_ge_u32 s2, 0x100\ns_cbranch_scc1 L_exit")
    a("s_getpc_b64 s[48:49]\nL_pc:")
    a("s_lshr_b32 s32, s2, 3")
    a("s_cmp_eq_u32 s33, 0\ns_cbranch_scc1 L_svc0")
    a(f"s_and_b32 s3, s32, 1\ns_mulk_i32 s3, {code_lines*64}\ns_addk_i32 s3, -8192")
    a(f"v_min_u32 v1, {64 + code_lines//2-1}, v0\nv_lshl_add_u32 v1, v1, 7, s3")
    a("global_load_dword v7, v1, s[48:49]")
    a("v_and_b32 v0, 63, v0")
    dma_chunk128(0, 3, 4)
    a("v_lshl_add_u32 v3, v4, 13, v3")
    a(f"s_lshl4_add_u32 m0, s33, {WQ - 1024}")
    a("s_and_b32 s31, s2, 7\ns_lshr_b32 s37, s32, 4\ns_lshl1_add_u32 s37, s31, s37")
    a("s_bfe_u32 s44, s32, 0x20002\ns_mulk_i32 s44, 1152\ns_add_u32 s44, s44, s33\ns_addk_i32 s44, -64")
    a("s_and_b32 s45, s32, 3\ns_lshl2_add_u32 s45, s37, s45\ns_lshl3_add_u32 s44, s44, s45\ns_lshl_b32 s44, s44, 7")
    a("v_add_u32 v3, s44, v3\ns_mov_b32 s44, 0x80000\nv_add_u32 v4, s44, v3\nv_add_u32 v5, s44, v4")
    a("s_waitcnt lgkmcnt(0)")
    STAMP(1)
    a("global_load_lds_dwordx4 v3, s[10:11] nt")
    a("s_addk_i32 m0, 0x2000\ns_cmpk_lt_u32 s33, 192")
    a("global_load_lds_dwordx4 v4, s[10:11] nt")
    a("s_cbranch_scc0 L_wq2")
    a("s_addk_i32 m0, 0x2000")
    a("global_load_lds_dwordx4 v5, s[10:11] nt")
    a("s_branch L_wq2")
    a("L_end256:")
    a(".p2align 8")
    a("L_svc0:")
    a("s_setprio 3")
    a("v_mul_u32_u24 v2, 36, v0")
    a("s_waitcnt lgkmcnt(0)")
    a("global_load_dwordx4 v[10:13], v2, s[4:5]\nglobal_load_dwordx4 v[14:17], v2, s[4:5] offset:16\nglobal_load_dword v18, v2, s[4:5] offset:32")
    if tlb:
        a("s_and_b32 s31, s2, 7\ns_lshr_b32 s37, s32, 4\ns_lshl1_add_u32 s37, s31, s37")
        a("s_and_b32 s3, s32, 8\ns_lshl1_add_u32 s3, s3, s37\ns_lshl3_add_u32 s3, s3, 7\ns_lshl_b32 s3, s3, 20\nv_mov_b32 v19, s3")
        a("global_load_dword v19, v19, s[8:9] nt")
    if tlb > 1:
        a("v_min_u32 v41, 2, v0\nv_lshlrev_b32 v41, 21, v41")
        a("global_load_dword v38, v41, s[12:13] nt\nglobal_load_dword v39, v41, s[16:17] nt")
    a("v_lshlrev_b32 v40, 2, v0\nv_mov_b32 v56, -1\nv_mov_b32 v57, -1\nv_mov_b32 v3, 0\nv_mov_b32 v4, 0x3f803f80")
    a(f"ds_write2st64_b32 v40, v56, v57 offset0:{Q//256} offset1:{Q//256+1}")
    a(f"ds_write2st64_b32 v40, v3, v4 offset0:{STATW//256} offset1:{CF//256}")
    a("s_waitcnt lgkmcnt(0)")
    a("s_load_dwordx8 s[20:27], s[0:1], 64\ns_load_dwordx2 s[28:29], s[0:1], 96")
    a("s_barrier")
    a("s_branch L_service")

    a("L_wq2:")
    a(f"s_mov_b32 s44, {ends[0] & 0xffffffff:#x}\ns_mov_b32 s45, {ends[0] >> 32:#x}\ns_cmp_ge_u32 s32, 24")
    a(f"s_cselect_b32 s44, {ends[3] & 0xffffffff:#x}, s44\ns_cselect_b32 s45, {ends[3] >> 32:#x}, s45")
    a("s_lshl_b32 s46, s32, 3\ns_lshr_b64 s[44:45], s[44:45], s46")
    if ra: a(f"s_mul_i32 s45, s31, {ra}\ns_add_u32 s44, s44, s45")
    if rb: a(f"s_lshr_b32 s45, s32, 3\ns_mul_i32 s45, s45, {rb}\ns_add_u32 s44, s44, s45")
    a(f"s_add_u32 s44, s44, {128 + NSKIP - NMAX}\ns_and_b32 s44, s44, 127\ns_lshl_b32 s44, s44, 13")
    a("s_lshl4_add_u32 s46, s33, -1024")
    if wx: a(f"s_and_b32 s45, s32, {wx}\ns_lshl_b32 s45, s45, 10\ns_xor_b32 s46, s46, s45")
    a("s_add_u32 s46, s46, s44")
    a("v_bfe_u32 v5, v0, 2, 2\nv_lshrrev_b32 v4, 4, v0\nv_and_b32 v1, 3, v0")
    a("v_lshl_add_u32 v1, v1, 4, s46\nv_lshl_add_u32 v1, v4, 6, v1\nv_lshl_add_u32 v1, v5, 8, v1")
    a("s_and_b32 s3, s32, 8\ns_lshl1_add_u32 s3, s3, s37\ns_lshl3_add_u32 s3, s3, 7\ns_lshl_b32 s3, s3, 20")
    a("s_add_u32 s6, s6, s3\ns_addc_u32 s7, s7, 0\ns_mov_b32 s57, 0xfffff")
    if not latebe: a("s_barrier")
    issued = [1]
    def throttle():
        if issued[0] >= D:
            a(f"s_waitcnt vmcnt({D-1-dpat[issued[0] % len(dpat)]})")
            if xpat and issued[0] > D and xpat[issued[0] % len(xpat)]:
                a(f"s_cmp_eq_u32 s63, 0\ns_cbranch_scc0 L_x{issued[0]}\ns_waitcnt vmcnt({D-1-xpat[issued[0] % len(xpat)]})\nL_x{issued[0]}:")
        issued[0] += 1
    def load_unit(kind, t):
        base, areg, sb = (KR, 1, "s[6:7]") if kind == "K" else (VR, 2, "s[8:9]")
        if t < NSKIP: a(f"s_cmp_ge_u32 s34, {NMAX-t}\ns_cbranch_scc0 L_skip{kind}{t}")
        throttle()
        a(f"global_load_dwordx4 v[{base+4*t}:{base+4*t+3}], v{areg}, {sb} {kvf}")
        if t < NSKIP: a(f"L_skip{kind}{t}:")
        if kind == "K" and t == NMAX - 1: a(f"v_subrev_u32 v1, {(NMAX-1)*8192}, v1\nv_and_b32 v1, s57, v1")
        elif t != (NMAX - 1 if kind == "V" else NSKIP - 1): a(f"v_add_u32 v{areg}, 0x2000, v{areg}\nv_and_b32 v{areg}, s57, v{areg}")
    for t in list(range(NSKIP, NMAX)) + list(range(NSKIP)):
        load_unit("K", t)
        if t == NSKIP + D - 2:
            if latebe: a("s_barrier")
            a("s_lshl2_add_u32 s47, s32, L_table-L_pc")
            a("s_load_dword s30, s[48:49], s47\ns_load_dwordx8 s[20:27], s[0:1], 64\ns_load_dwordx2 s[28:29], s[0:1], 96")
            a("s_lshr_b32 s33, s33, 6\ns_sub_u32 s39, s33, 1")
            a(f"s_sub_u32 s46, s46, {NSKIP*8192}\ns_and_b32 s46, s46, s57\nv_lshl_add_u32 v2, v0, 4, s46")
            a("s_add_u32 s8, s8, s3\ns_addc_u32 s9, s9, 0")
            for tt in range(NSKIP):
                for k in range(4): a(f"v_mov_b32 v{KR+4*tt+k}, 0\nv_mov_b32 v{VR+4*tt+k}, 0")
            sel_masks(0, 12, 3)
            a("v_bfe_u32 v3, v0, 3, 1\nv_lshrrev_b32 v4, 4, v0\nv_and_b32 v20, 3, v0")
            a("v_lshlrev_b32 v20, 4, v20\nv_lshl_add_u32 v20, v4, 6, v20\nv_lshl_add_u32 v20, v3, 8, v20")
            for k in range(4): a(f"v_mov_b32 v{16+k}, 0")
            if xpat: a("s_getreg_b32 s63, hwreg(HW_REG_XCC_ID)\ns_and_b32 s63, s63, 1")
            a("s_lshl_b32 s3, s39, 2\nv_mov_b32 v3, s3\nv_mov_b32 v4, 1")
            a("s_waitcnt lgkmcnt(0)")
            a("s_bfe_u32 s34, s30, 0x50008\ns_bfe_u32 s35, s30, 0x20010\ns_bfe_u32 s36, s30, 0x50018")
        if t == NSKIP + D - 1:
            STAMP(2)
            a(f"ds_write_b32 v3, v4 offset:{CNT}")
        if t == 17: STAMP(3)
        if qmark and t == qmark: a(f"ds_write_b32 v3, v4 offset:{QM}")
    a("s_cmp_eq_u32 s35, 1\ns_cbranch_scc0 L_nowo")
    srd(12, 4096*576*2)
    dma_chunk128(0, 3, 4)
    a("v_and_b32 v4, 3, v4\nv_lshrrev_b32 v5, 5, v0\nv_lshl_add_u32 v4, v5, 4, v4")
    a("v_mul_u32_u24 v4, 1152, v4\nv_add_u32 v3, v3, v4")
    a("s_lshl_b32 s44, s31, 9\ns_lshr_b32 s45, s39, 1\ns_lshl_b32 s45, s45, 7\ns_add_u32 s44, s44, s45")
    a("s_and_b32 s45, s39, 1\ns_lshl_b32 s45, s45, 2\ns_add_u32 s44, s44, s45")
    a("s_mul_i32 s44, s44, 1152\ns_lshl_b32 s45, s36, 7\ns_add_u32 s44, s44, s45")
    a(f"s_lshl_b32 s47, s39, 13\ns_add_u32 s47, s47, {W}")
    for k in range(8):
        u, eh, gh = k >> 2, (k >> 1) & 1, k & 1
        a(f"s_add_u32 s45, s44, {(64*u + 32*gh + 8*eh)*1152}")
        a(f"s_add_u32 m0, s47, {k*1024}")
        a(f"s_waitcnt vmcnt({D-1})")
        a("buffer_load_dwordx4 v3, s[40:43], s45 offen nt lds")
    a("L_nowo:")
    ORDER = [0, 1, 4, 5, 6, 7, 2, 3] if stagger else list(range(8))
    s2_pre(3)
    a("s_lshl_b32 s3, s39, 2\nv_mov_b32 v1, s3")
    assert J >= NSKIP + D - 1
    for t in range(J): load_unit("V", t)
    nextv = [J]
    def more_v():
        if nextv[0] < NMAX: load_unit("V", nextv[0]); nextv[0] += 1
    for t in range(NSKIP):
        a(f"s_cmp_ge_u32 s34, {NMAX-t}\ns_cselect_b32 s{94+t}, 0, 0xff800000")
    a(f"s_mov_b32 s61, {f2u(128**-0.5)}\ns_mov_b32 s62, {f2u(LOG2E)}\ns_mov_b32 s46, {SPIN*8}")
    more_v()
    STAMP(4)
    a("L_qw:")
    a(f"ds_read_b128 v[8:11], v20 offset:{Q}\ns_waitcnt lgkmcnt(0)")
    a("v_max3_u32 v3, v8, v9, v10\nv_max_u32 v3, v3, v11\nv_cmp_eq_u32 vcc, -1, v3\ns_cbranch_vccz L_qok")
    a("s_sleep 1\ns_sub_u32 s46, s46, 1\ns_cbranch_scc0 L_qw")
    a("L_qok:")
    STAMP(5)
    k_ = lambda t, r=0: KR + 4*t + r
    def diag(t):
        a(f"v_mov_b32_dpp v{k_(t)}, v{k_(t)} quad_perm:[0,0,0,0] {DPPF}")
        for r in (1, 2, 3): a(f"v_add_f32_dpp v{k_(t)}, v{k_(t,r)}, v{k_(t)} quad_perm:[{r},{r},{r},{r}] {DPPF}")
    LAG = 3
    for t in range(NMAX + LAG):
        if t < NMAX: a(f"v_mfma_f32_16x16x32_bf16 v[{k_(t)}:{k_(t,3)}], v[{k_(t)}:{k_(t,3)}], v[8:11], 0")
        if t >= LAG: diag(t - LAG)
    more_v()
    for t in range(0, NMAX, 2):
        if not noround: round2(k_(t), k_(t+1), 3)
        a(f"v_mul_f32 v{k_(t)}, s61, v{k_(t)}\nv_mul_f32 v{k_(t+1)}, s61, v{k_(t+1)}")
        if not noround: round2(k_(t), k_(t+1), 3)
    for t in range(NSKIP): a(f"v_add_f32 v{k_(t)}, s{94+t}, v{k_(t)}")
    a(f"v_max_f32 v4, v{k_(0)}, v{k_(1)}")
    for t in range(2, NMAX, 2): a(f"v_max3_f32 v4, v{k_(t)}, v{k_(t+1)}, v4")
    more_v()
    for sw in (16, 32):
        a(f"v_mov_b32 v3, v4\nv_permlane{sw}_swap_b32 v4, v3\nv_max_f32 v4, v4, v3")
    a("v_mul_f32 v4, s62, v4")
    a("v_mov_b32 v5, 0")
    for t in range(NMAX):
        a(f"v_fma_f32 v{k_(t)}, v{k_(t)}, s62, -v4")
    for t in range(NMAX):
        a(f"v_exp_f32 v{k_(t)}, v{k_(t)}")
    for t in range(NMAX):
        a(f"v_add_f32 v5, v5, v{k_(t)}")
        a(f"v_cvt_pk_bf16_f32 v{k_(t)}, v{k_(t)}, v{k_(t)}")
    for sw in (16, 32):
        a(f"v_mov_b32 v3, v5\nv_permlane{sw}_swap_b32 v5, v3\nv_add_f32 v5, v5, v3")
    a("v_bfe_u32 v3, v0, 3, 1\ns_lshl_b32 s3, s39, 3\nv_lshl_add_u32 v3, v3, 6, s3")
    a(f"ds_write_b64 v3, v[4:5] offset:{STATW}")
    STAMP(6)
    more_v()
    for t in range(NMAX):
        for r in (3, 2, 1, 0): a(f"v_and_b32 v{k_(t,r)}, v{12+r}, v{k_(t)}")
    a("s_lshl_b32 s3, s39, 10\nv_lshl_add_u32 v3, v0, 4, s3")
    def pv(t): a(f"v_mfma_f32_16x16x32_bf16 v[16:19], v[{k_(t)}:{k_(t,3)}], v[{VR+4*t}:{VR+4*t+3}], v[16:19]")
    done = 0
    while nextv[0] < NMAX:
        n = nextv[0]; more_v()
        if n == NMAX - 1 - lvpos: a(f"ds_write_b32 v1, v5 offset:{LV}")
        while done <= n - D: pv(done); done += 1
    def drain(done, extra):
        while done < NMAX:
            a(f"s_waitcnt vmcnt({extra + min(NMAX-1-done, D-1)})")
            hi = max(done, NMAX - D)
            while done <= hi: pv(done); done += 1
        STAMP(7)
        a(f"ds_write_b128 v3, v[16:19] offset:{OP}")
        a("s_waitcnt lgkmcnt(0)\ns_barrier")
        STAMP(8)
    assert done >= 8
    a("s_cmp_eq_u32 s35, 1\ns_cbranch_scc1 L_s1pre")
    drain(done, 0)
    a("s_branch L_dyn")
    a("L_s1pre:")
    a(f"s_lshr_b32 s3, s39, 1\ns_lshl_b32 s3, s3, 6\ns_mul_i32 s44, s31, {H2S}\ns_add_u32 s3, s3, s44\ns_add_u32 s3, s3, {ST}")
    a("v_and_b32 v1, 48, v0\nv_add_u32 v1, s3, v1")
    a(f"s_lshl3_add_u32 s3, s31, s39\ns_lshl_b32 s3, s3, 11\ns_add_u32 s3, s3, {H1}")
    a("v_lshl_add_u32 v2, v0, 4, s3")
    tr_addr128(0, 4, 8, 47)
    for u in range(2):
        for ct in range(4):
            for eh in range(2):
                r = WOF + (u*4 + ct)*4 + 2*eh
                a(f"ds_read_b64_tr_b16 v[{r}:{r+1}], v{4+ct} offset:{(32*u + 16*eh)*128}")
    a("s_lshl_b32 s3, s39, 9\nv_lshl_add_u32 v10, v0, 3, s3\nv_mov_b32 v11, 0")
    a(f"s_mov_b32 s46, {SPIN}")
    drain(done, 0)
    a(f"ds_read_b32 v4, v11 offset:{ROLE + 8}")
    a("global_load_dwordx4 v[20:23], v1, s[28:29] sc1")
    a("s_waitcnt lgkmcnt(0)\nv_add_u32 v2, v2, v4")
    a("global_load_dwordx4 v[24:27], v2, s[28:29] sc1\nglobal_load_dwordx4 v[28:31], v2, s[28:29] offset:1024 sc1")
    a("s_waitcnt vmcnt(2)")
    a("L_fw:")
    a("v_max3_u32 v8, v20, v21, v22\nv_max_u32 v8, v8, v23\nv_cmp_eq_u32 vcc, -1, v8\ns_cbranch_vccnz L_fretry")
    a("L_fok:")
    a("v_max3_f32 v8, v20, v21, v22\nv_max_f32 v8, v8, v23\nv_mov_b32 v9, v8\nv_permlane16_swap_b32 v8, v9\nv_max_f32 v8, v8, v9")
    for r in range(4): a(f"v_sub_f32 v{20+r}, v{20+r}, v8")
    for r in range(4): a(f"v_exp_f32 v{20+r}, v{20+r}")
    a("v_add_f32 v8, v20, v21\nv_add_f32 v9, v22, v23\nv_add_f32 v8, v8, v9\nv_mov_b32 v9, v8\nv_permlane16_swap_b32 v8, v9\nv_add_f32 v8, v8, v9")
    a("v_rcp_f32 v8, v8")
    for r in range(4): a(f"v_mul_f32 v{20+r}, v8, v{20+r}")
    a(f"s_mov_b32 s46, {SPIN}")
    STAMP(9)
    a("L_s1poll:")
    if p1:
        a("s_waitcnt vmcnt(0)\ns_branch L_h1c")
        ppoll("h1", [24, 28], [f"global_load_dwordx4 v[{24+4*k}:{27+4*k}], v2, s[28:29] offset:{1024*k} sc1" for k in range(2)], p1, 0, 8, init=False)
    else:
        a("s_waitcnt vmcnt(0)")
        a("v_max3_u32 v8, v24, v25, v26\nv_max3_u32 v9, v27, v28, v29\nv_max3_u32 v8, v30, v31, v8\nv_max_u32 v8, v8, v9")
        a("v_cmp_eq_u32 vcc, -1, v8\ns_cbranch_vccnz L_s1retry")
    a("L_s1go:")
    STAMP(10)
    for ct in range(4):
        for u in range(2):
            r = WOF + (u*4 + ct)*4; d = 32 + 4*ct
            a(f"v_mfma_f32_16x16x32_bf16 v[{d}:{d+3}], v[{24+4*u}:{27+4*u}], v[{r}:{r+3}], {'0' if u == 0 else f'v[{d}:{d+3}]'}")
    def scale(ct):
        d = 32 + 4*ct
        a(f"v_pk_mul_f32 v[{d}:{d+1}], v[{d}:{d+1}], v[20:21]\nv_pk_fma_f32 v[{d}:{d+1}], v[{d+2}:{d+3}], v[22:23], v[{d}:{d+1}]\nv_add_f32 v{d}, v{d}, v{d+1}")
    scale(0); scale(1); scale(2)
    a("v_permlane16_swap_b32 v32, v36")
    scale(3)
    a("v_add_f32 v32, v32, v36")
    a("v_permlane16_swap_b32 v40, v44\nv_add_f32 v33, v40, v44")
    a(f"ds_write_b64 v10, v[32:33] offset:{RED}")
    STAMP(11)
    a("s_waitcnt lgkmcnt(0)\ns_barrier")
    if stamp: a("s_branch L_fin")
    a("L_exit:\ns_endpgm")
    a("L_s1retry:")
    a("s_sub_u32 s46, s46, 1\ns_cbranch_scc1 L_s1go")
    if s1sleep: a(f"s_sleep {s1sleep}")
    if masked: a("s_mov_b64 exec, vcc")
    a("global_load_dwordx4 v[24:27], v2, s[28:29] sc1\nglobal_load_dwordx4 v[28:31], v2, s[28:29] offset:1024 sc1")
    if masked: a("s_mov_b64 exec, -1")
    a("s_branch L_s1poll")
    a("L_fretry:")
    a("s_sub_u32 s46, s46, 1\ns_cbranch_scc1 L_fok")
    a("global_load_dwordx4 v[20:23], v1, s[28:29] sc1\ns_waitcnt vmcnt(0)\ns_branch L_fw")

    a("L_service:")
    a("s_and_b32 s31, s2, 7\ns_lshr_b32 s37, s32, 4\ns_lshl1_add_u32 s37, s31, s37")
    a("s_lshl2_add_u32 s47, s32, L_table-L_pc")
    a("s_load_dword s30, s[48:49], s47")
    a("s_bfe_u32 s38, s32, 0x20002\ns_and_b32 s39, s32, 3")
    a("s_getreg_b32 s51, hwreg(HW_REG_XCC_ID)")
    a(f"s_and_b32 s51, s51, 15\ns_movk_i32 s57, {Q}")
    a(f"s_mov_b32 s3, {WQ}"); tr_addr128(0, 44, 41, 3, (0, 1, 2, 3))
    a("v_bfe_u32 v4, v0, 3, 1\nv_mul_u32_u24 v4, 1152, v4\nv_lshrrev_b32 v41, 4, v0\nv_lshl_add_u32 v4, v41, 3, v4")
    a("s_mul_i32 s3, s38, 288\nv_add_u32 v4, s3, v4")
    a("v_and_b32 v3, 16, v0\nv_cmp_ne_u32 s[58:59], 0, v3")
    a(f"s_lshl2_add_u32 s3, s37, s38\ns_lshl3_add_u32 s3, s3, s39\ns_lshl_b32 s3, s3, 8\ns_add_u32 s3, s3, {QP}")
    a("v_and_b32 v43, 31, v0\nv_lshl_add_u32 v43, v43, 3, s3\nv_lshrrev_b32 v3, 5, v0\nv_lshl_add_u32 v43, v3, 10, v43")
    a("v_and_b32 v6, 28, v40")
    a(f"s_waitcnt lgkmcnt(0)\ns_load_dword s62, s[28:29], {EP}")
    a(f"s_mul_i32 s56, s31, {H2S}\ns_add_u32 s56, s56, {H2}")
    a("s_cmp_eq_u32 s32, 2\ns_cbranch_scc0 L_c1")
    a("v_mov_b32 v58, -1\nv_mov_b32 v59, -1\nv_lshl_add_u32 v3, v0, 4, s56")
    for k in range(3): a(f"global_store_dwordx4 v3, v[56:59], s[28:29] offset:{1024*k} sc1")
    a("L_c1:")
    a("s_waitcnt vmcnt(0)")
    if tlb > 2:
        a("v_min_u32 v41, 2, v0\nv_lshlrev_b32 v41, 21, v41\nv_mov_b32 v42, 0")
        a("global_load_dword v19, v41, s[20:21] nt\nglobal_load_dword v19, v42, s[18:19]\nglobal_load_dword v19, v42, s[22:23]")
    for r in range(9):
        a(f"v_lshlrev_b32 v{20+2*r}, 16, v{10+r}\nv_and_b32 v{21+2*r}, 0xffff0000, v{10+r}")
        a(f"ds_write_b32 v2, v{10+r} offset:{XR + 4*r}")
    pkadd(20, 22, 38)
    for r in range(2, 9): pkadd(38, 20 + 2*r)
    a("v_add_f32 v38, v38, v39")
    def half_sum(r, tmp):
        row_sum(r); a(f"v_mov_b32 v{tmp}, v{r}\nv_permlane16_swap_b32 v{r}, v{tmp}\nv_add_f32 v{r}, v{r}, v{tmp}")
    half_sum(38, 39)
    a(f"v_mul_f32 v38, {f2u(-1/576)}, v38\nv_mov_b32 v39, v38")
    for r in range(9):
        pkadd(20 + 2*r, 38, 10)
        a("v_pk_mul_f32 v[12:13], v[10:11], v[10:11]" if r == 0 else "v_pk_fma_f32 v[12:13], v[10:11], v[10:11], v[12:13]")
    a("v_add_f32 v42, v12, v13")
    half_sum(42, 41)
    a(f"v_mul_f32 v42, {f2u(1/576)}, v42")
    round2(38, 42, 41)
    a(f"v_mov_b32 v39, v38\nv_add_f32 v42, {f2u(1e-5)}, v42"); round1(42)
    a("v_sqrt_f32 v42, v42"); round1(42)
    a("v_rcp_f32 v10, v42\nv_mov_b32 v11, v10")
    for r in range(9):
        x, y = 20 + 2*r, 21 + 2*r
        pkadd(x, 38); round2(x, y, 41)
        a(f"v_pk_mul_f32 v[{x}:{y}], v[{x}:{y}], v[10:11]")
        a(f"v_cvt_pk_bf16_f32 v{x}, v{x}, v{y}")
        a(f"ds_write_b32 v2, v{x} offset:{XN + 4*r}")
    a(f"s_mov_b32 s46, {SPIN*8}")
    a("L_wqw:")
    a(f"ds_read_b32 v3, v6 offset:{CNT}\ns_waitcnt lgkmcnt(0)")
    a("v_cmp_eq_u32 vcc, 0, v3\ns_cbranch_vccz L_wqok")
    a("s_sleep 1\ns_sub_u32 s46, s46, 1\ns_cbranch_scc0 L_wqw")
    a("L_wqok:")
    STAMP(1)
    for v in range(9): a(f"ds_read_b64 v[{20+2*v}:{21+2*v}], v4 offset:{XN + 32*v}")
    a(f"s_mul_i32 s63, s62, {TAGMUL}\ns_add_u32 s63, s63, {TAGADD}")
    a("s_add_u32 s62, s62, 1\ns_and_b32 s60, s62, 0xff\ns_xor_b32 s61, s60, 0x80")
    a("s_bfe_u32 s35, s30, 0x20010\ns_bfe_u32 s36, s30, 0x50018")
    for ct in range(4):
        for v in range(9):
            r = 64 + (ct*9 + v)*2
            a(f"ds_read_b64_tr_b16 v[{r}:{r+1}], v{44+ct} offset:{2048*v}")
    a("s_waitcnt lgkmcnt(0)")
    for v in range(0, 9, 2):
        for ct in range(4):
            r = 64 + (ct*9 + v)*2; d = 140 + 4*ct
            if v < 8: a(f"v_mfma_f32_16x16x32_bf16 v[{d}:{d+3}], v[{20+2*v}:{23+2*v}], v[{r}:{r+3}], {'0' if v == 0 else f'v[{d}:{d+3}]'}")
            else: a(f"v_mfma_f32_16x16x16_bf16 v[{d}:{d+3}], v[{20+2*v}:{21+2*v}], v[{r}:{r+1}], v[{d}:{d+3}]")
    a("v_mov_b32 v23, s63\nv_mov_b32 v22, 0xffffff00")
    a("v_cndmask_b32 v46, v140, v144, s[58:59]\nv_cndmask_b32 v47, v148, v152, s[58:59]")
    a("v_add_u32 v46, 0x80, v46\nv_add_u32 v47, 0x80, v47\nv_and_or_b32 v46, v46, v22, s60\nv_and_or_b32 v47, v47, v22, s61")
    a("global_store_dwordx2 v43, v[46:47], s[28:29]")
    STAMP(2)
    a(f"s_lshl_b32 s44, s31, 5\ns_add_u32 s44, s44, s32\ns_lshl_b32 s3, s44, 9\ns_add_u32 s3, s3, {H1}")
    a("v_lshl_add_u32 v45, v0, 3, s3")
    a("global_store_dwordx2 v45, v[56:57], s[28:29]")
    a("v_mov_b32 v22, s51")
    a("s_cmp_eq_u32 s32, 2\ns_cbranch_scc0 L_c2")
    a(f"s_lshl_b32 s3, s31, 7\ns_add_u32 s3, s3, {CFL}\nv_lshl_add_u32 v4, v0, 3, s3\ns_mov_b64 exec, 0xffff")
    a("global_store_dwordx2 v4, v[22:23], s[28:29] sc1\ns_mov_b64 exec, -1")
    a("L_c2:")
    a(f"s_lshl3_add_u32 s3, s44, {FL}\nv_mov_b32 v4, s3\ns_lshl_b32 s3, s44, 6\ns_add_u32 s3, s3, {FLF}\nv_mov_b32 v27, s3")
    a(f"v_add_u32 v43, {FAR}, v43")
    a(f"s_lshl_b32 s3, s37, 13\ns_and_b32 s46, s32, 15\ns_lshl4_add_u32 s3, s46, s3\ns_add_u32 s3, s3, {H1}")
    a("v_lshrrev_b32 v8, 1, v0\nv_lshl_add_u32 v8, v8, 8, s3\nv_and_b32 v9, 1, v0\nv_lshl_add_u32 v8, v9, 3, v8")
    a("s_lshl_b32 s3, s36, 8\ns_add_u32 s3, s3, s56\nv_lshl_add_u32 v5, v0, 2, s3")
    a("s_and_b32 s3, s32, 16\ns_lshl1_add_u32 s46, s3, s46\ns_lshl2_add_u32 s46, s46, s56\ns_add_u32 s46, s46, 2304")
    a("v_bfe_u32 v9, v0, 3, 1\nv_lshl_add_u32 v9, v9, 6, s46")
    a(f"s_bfe_u32 s45, s32, 0x10003\ns_lshl3_add_u32 s44, s37, s45\ns_lshl_b32 s44, s44, 10\ns_add_u32 s44, s44, {QP + 4096}")
    a("v_lshl_add_u32 v44, v0, 4, s44")
    a("s_waitcnt vmcnt(0)")
    a("s_mov_b64 exec, 1\nglobal_store_dwordx2 v4, v[22:23], s[28:29]\ns_mov_b64 exec, -1")
    def announce():
        a("global_store_dwordx2 v43, v[46:47], s[28:29] sc1")
        a("s_mov_b64 exec, 1\nglobal_store_dwordx2 v27, v[22:23], s[28:29] sc1\ns_mov_b64 exec, -1")
    STAMP(3)
    a(f"s_mov_b32 s46, 0")
    a("L_qpoll:")
    for k in range(4): a(f"global_load_dwordx4 v[{64+4*k}:{67+4*k}], v44, s[28:29] offset:{2048*k - 4096} sc1")
    a("s_waitcnt vmcnt(0)")
    for k in range(16): a(f"v_xor_b32 v{64+k}, s{60 + (k & 1)}, v{64+k}")
    a("v_or_b32 v20, v64, v65")
    for k in range(1, 8): a(f"v_or3_b32 v20, v20, v{64+2*k}, v{65+2*k}")
    a("v_and_b32 v20, 0xff, v20\nv_cmp_ne_u32 vcc, 0, v20\ns_cbranch_vccz L_qgo")
    a(f"s_add_u32 s46, s46, 1\ns_cmp_lt_u32 s46, {NFAIL}\ns_cbranch_scc1 L_qpoll")
    a(f"v_xor_b32 v44, {FAR}, v44\ns_cmp_eq_u32 s46, {NFAIL}\ns_cbranch_scc0 L_qnoann")
    announce()
    a(f"L_qnoann:\ns_cmp_lt_u32 s46, {SPIN}\ns_cbranch_scc1 L_qpoll")
    a("L_qgo:")
    pkadd(64, 68); pkadd(66, 70); pkadd(72, 76); pkadd(74, 78); pkadd(64, 72); pkadd(66, 74)
    a("v_cvt_pk_bf16_f32 v20, v64, v66\nv_cvt_pk_bf16_f32 v21, v65, v67")
    a(f"v_and_b32 v4, 0xc0, v40\nv_add3_u32 v4, v4, v40, s57\nds_write2_b32 v4, v20, v21 offset0:0 offset1:16")
    STAMP(4)
    a(f"s_lshl_b32 s3, s31, 8\ns_add_u32 s3, s3, {FL}\nv_lshl_add_u32 v44, v0, 3, s3\nv_and_b32 v25, 7, v0\nv_lshlrev_b32 v25, 7, v25\nv_add_u32 v25, {CFL}, v25")
    a("v_cmp_gt_u32 s[58:59], 32, v0\nv_cndmask_b32 v44, v25, v44, s[58:59]")
    a(f"s_lshl_b32 s3, s31, 11\ns_add_u32 s3, s3, {FLF}\nv_and_b32 v26, 31, v0\nv_lshl_add_u32 v26, v26, 6, s3")
    a("global_load_dwordx2 v[64:65], v44, s[28:29] sc1")
    s2_pre(2)
    sel_masks(0, 12, 2)
    a("s_mov_b32 s46, 0\ns_mov_b32 s34, 0")
    if not local: a("s_branch L_far")
    a("L_fpoll:")
    a("s_waitcnt vmcnt(0)\nv_cmp_ne_u32 s[44:45], s63, v65\nv_cmp_ne_u32 vcc, s51, v64")
    a("s_andn2_b32 s3, vcc_lo, s44\ns_cbranch_scc1 L_far")
    a("s_cmp_eq_u64 s[44:45], 0\ns_cbranch_scc0 L_fretry2")
    a("L_fgo:")
    a("s_cmp_eq_u32 s35, 1\ns_cbranch_scc0 L_nof")
    a(f"s_lshl3_add_u32 s3, s31, s36\ns_lshl_b32 s3, s3, 11\ns_add_u32 s3, s3, {H1}\nv_lshl_add_u32 v42, v0, 5, s3")
    a("s_cmp_eq_u32 s36, 8\ns_cbranch_scc0 L_pw")
    a(f"s_add_u32 s3, s56, 2304\nv_add_u32 v42, s3, v40")
    a("L_pw:")
    a("global_load_dword v58, v42, s[28:29] sc1")
    a("L_nof:")
    STAMP(5)
    a(f"v_and_b32 v4, 15, v0\nv_lshlrev_b32 v4, 3, v4\ns_mov_b32 s46, {SPIN*8}")
    a("L_stw:")
    a(f"ds_read_b64 v[60:61], v4 offset:{STATW}\ns_waitcnt lgkmcnt(0)")
    a("v_cmp_eq_u32 vcc, 0, v61\ns_cbranch_vccz L_stok")
    a("s_sleep 2\ns_sub_u32 s46, s46, 1\ns_cbranch_scc0 L_stw")
    a("L_stok:")
    STAMP(6)
    def ticket():
        a("s_mov_b32 s38, 1\ns_xor_b32 s39, s36, s31\ns_and_b32 s39, s39, 1\ns_lshl_b32 s3, s39, 7")
        if loct == 1: a("s_lshl_b32 s3, s31, 5")
        if loct == 2:
            a("s_lshr_b32 s39, s31, 1\ns_xor_b32 s3, s39, s31\ns_and_b32 s3, s3, 1\ns_lshl_b32 s3, s3, 7\ns_lshl_b32 s39, s39, 3\ns_lshl_b32 s38, 1, s39")
        a("s_cmp_eq_u32 s35, 1\ns_cbranch_scc1 L_notick")
        if loct == 3: a("s_add_u32 s3, s56, 2560\ns_atomic_add s38, s[28:29], s3 glc")
        elif loct == 4: a("s_mov_b32 s38, s36")
        else: a("s_atomic_add s38, s[26:27], s3 glc")
        a("L_notick:")
    if not tick_lv: ticket()
    a("v_mov_b32 v62, v60"); oct_red(62, "v_max_f32")
    a("v_sub_f32 v60, v60, v62\nv_exp_f32 v60, v60\nv_mul_f32 v61, v61, v60"); oct_red(61, "v_add_f32")
    a("v_rcp_f32 v59, v61\nv_log_f32 v61, v61\nv_mul_f32 v60, v60, v59\nv_add_f32 v62, v61, v62")
    a("s_mov_b64 exec, 0x101\ns_cmp_eq_u32 s34, 0\ns_cbranch_scc1 L_stnear")
    a("global_store_dword v9, v62, s[28:29] sc1\ns_branch L_stdone")
    a("L_stnear:\nglobal_store_dword v9, v62, s[28:29]\nL_stdone:\ns_mov_b64 exec, -1")
    a(f"v_lshrrev_b32 v4, 1, v4\nds_write_b32 v4, v60 offset:{CF}")
    a("v_lshrrev_b32 v4, 5, v0\nv_lshlrev_b32 v4, 5, v4")
    a("s_waitcnt lgkmcnt(0)")
    a(f"ds_read_b128 v[48:51], v4 offset:{CF}\nds_read_b128 v[52:55], v4 offset:{CF+16}")
    def lv_wait(name, all_):
        a(f"v_and_b32 v4, 28, v40\ns_mov_b32 s46, {SPIN*8}")
        a(f"L_{name}w:")
        a(f"ds_read_b32 v3, v4 offset:{LV}\ns_waitcnt lgkmcnt(0)")
        a(f"v_cmp_eq_u32 vcc, 0, v3\ns_cbranch_vccz L_{name}ok" if all_ else f"v_cmp_ne_u32 vcc, 0, v3\ns_cbranch_vccnz L_{name}ok")
        a(f"s_sleep 1\ns_sub_u32 s46, s46, 1\ns_cbranch_scc0 L_{name}w")
        a(f"L_{name}ok:")
    if tick_lv:
        lv_wait("lv", False)
        ticket()
    a("s_waitcnt lgkmcnt(0)")
    a("s_mov_b32 s47, 0")
    if loct == 3: a("s_add_u32 s38, s38, 1")
    if loct == 2: a("s_mul_i32 s44, s38, 0x01010101\ns_lshr_b32 s44, s44, 24\ns_lshr_b32 s38, s38, s39\ns_and_b32 s38, s38, 0xff")
    for th in ntr: a(f"s_cmp_ge_u32 s{44 if loct == 2 else 38}, {th}\ns_addc_u32 s47, s47, 0")
    a(f"s_cmp_lt_u32 s38, {2 if loct else 9}\ns_cselect_b32 s47, {ntrs}, s47")
    NTR = max(len(ntr), ntrs)
    if loct:
        a("s_lshr_b32 s44, s38, 1\ns_lshl_b32 s45, s44, 2\ns_mov_b32 s58, 0x65421003\ns_mov_b32 s59, 7\ns_lshr_b64 s[58:59], s[58:59], s45\ns_and_b32 s45, s58, 7")
        a("s_lshl3_add_u32 s45, s31, s45\ns_add_u32 s3, s31, 64\ns_cmp_eq_u32 s44, 1\ns_cselect_b32 s45, s3, s45")
        a("s_and_b32 s3, s38, 1\ns_lshl1_add_u32 s45, s45, s3\ns_mul_i32 s3, s31, 5\ns_add_u32 s3, s3, s38\ns_add_u32 s3, s3, 126")
        a("s_cmp_lt_u32 s38, 18\ns_cselect_b32 s38, s45, s3")
    else:
        a("s_lshl3_add_u32 s44, s38, 3\ns_sub_u32 s45, s38, 5\ns_mul_i32 s45, s45, 37\ns_lshr_b32 s45, s45, 8\ns_add_u32 s45, s45, s38\ns_sub_u32 s45, s45, 9")
        a("s_cmp_lt_u32 s38, 9\ns_cselect_b32 s44, s44, s45\ns_cmp_lt_u32 s38, 72\ns_cselect_b32 s38, s44, s38\ns_lshl1_add_u32 s38, s38, s39")
    a(f"s_and_b32 s3, s62, 0xfff\ns_lshl4_add_u32 s3, s3, s47")
    a(f"v_mov_b32 v4, 0\nv_mov_b32 v2, s38\nv_mov_b32 v3, s3\nds_write_b64 v4, v[2:3] offset:{ROLE}")
    a(f"v_mov_b32 v2, s34\nds_write_b32 v4, v2 offset:{ROLE + 8}")
    if NTR:
        a("s_cmp_eq_u32 s35, 1\ns_cbranch_scc1 L_notr\ns_cmp_lt_u32 s38, 144\ns_cbranch_scc0 L_notr\ns_cmp_eq_u32 s47, 0\ns_cbranch_scc1 L_notr")
        lv_wait("lv2", lvall)
        a(f"s_mul_i32 s45, s38, {32*1152}")
        for rb in range(NTR):
            if rb: a(f"s_cmp_gt_u32 s47, {rb}\ns_cbranch_scc0 L_notr")
            for lc in range(9):
                a(f"s_mov_b32 m0, {W + 36864 + 4096*lc + 1024*rb}")
                if rb or lc: a(f"s_add_u32 s45, s45, {128 if lc else 8*1152 - 8*128}")
                a("buffer_load_dwordx4 v7, s[52:55], s45 offen nt lds")
        a("L_notr:")
    a("v_lshlrev_b32 v4, 4, v0")
    a("s_waitcnt lgkmcnt(0)")
    STAMP(7)
    a("s_barrier")
    for w in range(8): a(f"ds_read_b128 v[{64+4*w}:{67+4*w}], v4 offset:{OP + 1024*w}")
    STAMP(8)
    for w in range(8):
        a(f"s_waitcnt lgkmcnt({0 if stamp else 7-w})")
        c = 48 + (w & ~1); sel = "op_sel:[0,1,0]" if w & 1 else "op_sel_hi:[1,0,1]"
        for k in (0, 2):
            if w == 0: a(f"v_pk_mul_f32 v[{60+k}:{61+k}], v[{64+k}:{65+k}], v[48:49] op_sel_hi:[1,0]")
            else: a(f"v_pk_fma_f32 v[{60+k}:{61+k}], v[{64+4*w+k}:{65+4*w+k}], v[{c}:{c+1}], v[{60+k}:{61+k}] {sel}")
    a("s_cmp_eq_u32 s34, 0")
    a("v_cvt_pk_bf16_f32 v60, v60, v61\nv_cvt_pk_bf16_f32 v61, v62, v63")
    a("s_cbranch_scc0 L_pubfar")
    a("global_store_dwordx2 v8, v[60:61], s[28:29]")
    a("L_pubdone:")
    STAMP(9)
    a("s_cmp_eq_u32 s35, 1\ns_cbranch_scc0 L_dyns")
    a("v_lshlrev_b32 v4, 3, v0")
    a("s_barrier")
    for w in range(4): a(f"ds_read2st64_b64 v[{64+4*w}:{67+4*w}], v4 offset0:{(RED + 1024*w)//512} offset1:{(RED + 1024*w + 512)//512}")
    STAMP(10)
    for w in range(4):
        a(f"s_waitcnt lgkmcnt({0 if stamp else 3-w})")
        pkadd(64 + 4*w, 66 + 4*w)
        if w: pkadd(64, 64 + 4*w)
    a("v_cvt_pk_bf16_f32 v64, v64, v65\nglobal_store_dword v5, v64, s[28:29] sc1")
    STAMP(11)
    a("s_branch L_fin" if stamp else "s_endpgm")
    a("L_fretry2:")
    a(f"s_add_u32 s46, s46, 1\ns_cmp_lt_u32 s46, {NFAIL}\ns_cbranch_scc1 L_fagain")
    a(f"s_cmp_eq_u32 s46, {NFAIL}\ns_cbranch_scc0 L_fnoann")
    announce()
    a("L_fnoann:")
    a("global_load_dwordx2 v[66:67], v26, s[28:29] sc1\ns_waitcnt vmcnt(0)")
    a("v_cmp_ne_u32 s[44:45], s63, v67\nv_cmp_ne_u32 vcc, s51, v66\ns_andn2_b32 s3, vcc_lo, s44\ns_cbranch_scc1 L_far")
    a(f"s_cmp_lt_u32 s46, {SPIN}\ns_cbranch_scc0 L_fgo")
    a("L_fagain:")
    a("global_load_dwordx2 v[64:65], v44, s[28:29] sc1\ns_branch L_fpoll")
    a("L_far:")
    announce()
    a(f"s_mov_b32 s34, {FAR}\nv_add_u32 v45, s34, v45\nv_add_u32 v8, s34, v8")
    a("global_store_dwordx2 v45, v[56:57], s[28:29] sc1")
    a("v_add_u32 v26, 8, v26\nv_cndmask_b32 v44, v25, v26, s[58:59]")
    a("s_waitcnt vmcnt(0)")
    a("s_mov_b64 exec, 1\nglobal_store_dwordx2 v27, v[22:23], s[28:29] offset:8 sc1\ns_mov_b64 exec, -1")
    a(f"s_mov_b32 s46, {SPIN}")
    a("L_far2:")
    a("s_sleep 8\nglobal_load_dwordx2 v[64:65], v44, s[28:29] sc1\ns_waitcnt vmcnt(0)")
    a("v_cmp_ne_u32 vcc, s63, v65\ns_cbranch_vccz L_nof")
    a("s_sub_u32 s46, s46, 1\ns_cbranch_scc0 L_far2\ns_branch L_nof")
    a("L_pubfar:")
    a("global_store_dwordx2 v8, v[60:61], s[28:29] sc1\ns_branch L_pubdone")

    a("L_dyns:")
    a("s_cmp_lt_u32 s38, 144\ns_cbranch_scc1 L_s2\ns_branch L_s3s")
    a("L_dyn:")
    a(f"v_mov_b32 v4, 0\nds_read_b64 v[4:5], v4 offset:{ROLE}\ns_waitcnt lgkmcnt(0)\nv_readfirstlane_b32 s38, v4\nv_readfirstlane_b32 s47, v5")
    a("s_lshr_b32 s62, s47, 4\ns_and_b32 s47, s47, 15")
    a("s_cmp_lt_u32 s38, 144\ns_cbranch_scc0 L_s3w")
    a("L_s2:")
    s2_setup()
    a("s_barrier")
    if fine2: STAMP(1)
    if stamp: a("s_mov_b32 s35, 2")
    a("global_load_ushort v21, v21, s[18:19]")
    def h4_touch():
        a(f"s_mul_i32 s3, s33, {4*18432}\ns_lshl_b32 s44, s38, 7\ns_add_u32 s3, s3, s44\ns_add_u32 s3, s3, {H4}")
        a(f"v_lshrrev_b32 v18, 4, v0\nv_mul_u32_u24 v18, 18432, v18\nv_add_u32 v18, s3, v18")
        if h4pf < 4: a(f"global_load_dword v19, v18, s[28:29] {h4f}")
    if h4pf == 1: h4_touch()
    for n, k in enumerate(ORDER):
        if 4 <= k < 4 + NTR:
            a(f"s_cmp_gt_u32 s47, {k-4}\ns_cbranch_scc1 L_trd{k}"); s2_dma(k, 6, 7); a(f"L_trd{k}:")
            continue
        if stagger and n == 6 and EARLY2 < 6:
            if h4pf == 2: h4_touch()
            if fine2: STAMP(2)
            a("s_barrier")
        s2_dma(k, 6, 7)
    if fine2:
        STAMP(3); a("s_waitcnt vmcnt(6)"); STAMP(4); a("s_waitcnt vmcnt(2)"); STAMP(5)
    a("v_bfe_u32 v4, v0, 4, 1\nv_and_b32 v5, 15, v0\nv_lshl_add_u32 v5, v5, 1, v4")
    a("s_lshl_b32 s3, s33, 8\nv_and_b32 v6, 24, v5\nv_lshl_add_u32 v7, v6, 3, s3\nv_and_b32 v6, 3, v5\nv_lshl_add_u32 v7, v6, 4, v7")
    a("v_and_b32 v6, 4, v5\nv_lshl_add_u32 v7, v6, 1, v7")
    a("v_lshrrev_b32 v4, 4, v5\nv_mul_u32_u24 v4, 1152, v4\nv_and_b32 v6, 8, v5\nv_lshl_add_u32 v4, v6, 3, v4\nv_and_b32 v6, 7, v5\nv_lshl_add_u32 v4, v6, 2, v4")
    a(f"s_lshl_b32 s3, s33, 7\nv_add_u32 v4, s3, v4\nds_read_b32 v50, v4 offset:{XR}\nds_read_b32 v51, v4 offset:{XR + 32}")
    for k in range(4): a(f"v_and_b32 v{12+k}, 0x3f803f80, v{12+k}")
    a("v_lshrrev_b32 v5, 4, v0\nv_mul_u32_u24 v8, 80, v0")
    a("v_bfe_u32 v4, v0, 3, 1\nv_mul_u32_u24 v20, 80, v4")
    a(f"s_lshl_b32 s3, s33, 8\ns_add_u32 s3, s3, {Y}\nv_lshl_add_u32 v9, v4, 7, s3\nv_lshl_add_u32 v9, v5, 4, v9")
    a(f"v_and_b32 v4, 3, v0\nv_cmp_eq_u32 vcc, 1, v4\nv_mov_b32 v6, {ONES}\nv_cndmask_b32 v9, v9, v6, vcc")
    a("v_lshl_add_u32 v4, v5, 2, v4\nv_bfe_u32 v6, v0, 2, 2\nv_lshl_add_u32 v4, v6, 4, v4")
    a("s_lshl_b32 s3, s33, 3\nv_mul_u32_u24 v10, 80, v4\nv_add_u32 v10, s3, v10\nv_add_u32 v11, s3, v20")
    a("s_mov_b32 s60, 1\ns_movk_i32 s61, 0x100")
    if h4pf >= 4: h4_touch()
    a(f"s_lshl_b32 s3, s33, 8\ns_add_u32 s3, s3, {H2}")
    a(f"v_mul_u32_u24 v4, {H2S}, v5\nv_and_b32 v24, 15, v0\nv_lshl_add_u32 v24, v24, 4, s3\nv_add_u32 v24, v24, v4\nv_add_u32 v25, {4*H2S}, v24")
    a(f"s_sub_u32 s39, s33, 1\ns_min_u32 s39, s39, 2")
    a(f"s_mul_i32 s3, s39, {12*18432}\ns_lshl_b32 s44, s38, 7\ns_add_u32 s3, s3, s44\ns_add_u32 s3, s3, {H4}")
    a("v_mul_u32_u24 v4, 18432, v5\nv_and_b32 v28, 15, v0\nv_lshl_add_u32 v28, v28, 3, s3\nv_add_u32 v28, v28, v4")
    a(f"v_add_u32 v29, {4*18432}, v28\nv_add_u32 v30, {8*18432}, v28")
    a("v_and_b32 v4, 16, v0\nv_cmp_ne_u32 s[58:59], 0, v4")
    a("v_lshrrev_b32 v4, 2, v0\nv_lshl_add_u32 v4, v4, 6, s50\nv_and_b32 v36, 3, v0\nv_lshl_add_u32 v4, v36, 3, v4")
    a("v_bfe_u32 v36, v0, 4, 1\nv_lshl_add_u32 v36, v36, 5, v4\nv_xor_b32 v37, 32, v36")
    a(f"s_mul_i32 s3, s39, {3*4096}\ns_add_u32 s3, s3, {W+36864}"); tr_addr128(0, 32, 38, 3)
    if b5early:
        a("s_waitcnt vmcnt(2)")
        a("s_barrier")

        a("s_sub_u32 s39, s33, 1\ns_cmp_lt_u32 s39, 3\ns_cbranch_scc0 L_s2nw2")
        for ln in range(3):
            for ct in range(4):
                for eh in range(2):
                    r = 80 + 16*ln + 4*ct + 2*eh
                    a(f"ds_read_b64_tr_b16 v[{r}:{r+1}], v{32+ct} offset:{4096*ln + 2048*eh}")
        a("L_s2nw2:")
    a("s_waitcnt vmcnt(0) lgkmcnt(0)")
    STAMP(10)
    for k in range(2): a(f"global_load_dwordx4 v[{40+4*k}:{43+4*k}], v{24+k}, s[28:29] sc1")
    for ct in range(2):
        for vl in range(4):
            r = 64 + ct*8 + 2*vl
            a(f"ds_read_b64_tr_b16 v[{r}:{r+1}], v{36+ct} offset:{1024*vl}")
    a("v_lshlrev_b32 v21, 16, v21\nv_lshlrev_b32 v48, 16, v50\nv_lshlrev_b32 v49, 16, v51\nv_and_b32 v50, 0xffff0000, v50\nv_and_b32 v51, 0xffff0000, v51")
    if not b5early:
        a("s_barrier")

        a("s_sub_u32 s39, s33, 1\ns_cmp_lt_u32 s39, 3\ns_cbranch_scc0 L_s2nw2")
        for ln in range(3):
            for ct in range(4):
                for eh in range(2):
                    r = 80 + 16*ln + 4*ct + 2*eh
                    a(f"ds_read_b64_tr_b16 v[{r}:{r+1}], v{32+ct} offset:{4096*ln + 2048*eh}")
        a("L_s2nw2:")
    c0 = -2 * LOG2E * 0.7978845608028654
    a(f"v_mov_b32 v34, {f2u(c0)}\nv_mov_b32 v35, {f2u(c0*0.044715)}\nv_mov_b32 v36, {f2u(1 + 1e-5)}\nv_mov_b32 v37, {f2u(1e-10)}\nv_mov_b32 v38, {f2u(1/576)}\nv_mov_b32 v39, v38")
    a("v_mov_b32 v33, 0xfffff000\ns_xor_b32 s63, s62, 0x880")
    def gf_store(skip):
        a(f"s_cmp_eq_u32 s57, 0\ns_cbranch_scc0 {skip}\nglobal_store_dwordx2 v26, v[16:17], s[28:29] sc1")
    if gf:
        a(f"s_and_b32 s57, s38, 0x8f\ns_xor_b32 s3, s33, 4\ns_or_b32 s57, s57, s3\ns_lshl3_add_u32 s3, s38, {GF}")
        a("v_and_b32 v26, 15, v0\nv_lshl_add_u32 v26, v26, 3, s3\nv_mov_b32 v16, s62\nv_mov_b32 v17, s63")
    a(f"s_mov_b32 s46, {SPIN}")
    a("L_s2poll:")
    a("s_waitcnt vmcnt(1)\nv_mfma_f32_16x16x32_bf16 v[56:59], v[12:15], v[40:43], v[48:51]")
    a("s_waitcnt vmcnt(0)\nv_mfma_f32_16x16x32_bf16 v[56:59], v[12:15], v[44:47], v[56:59]")
    a("v_cmp_u_f32 vcc, v56, v56")
    a("v_cvt_pk_bf16_f32 v56, v56, v57\nv_cvt_pk_bf16_f32 v57, v58, v59")
    a("s_cbranch_vccnz L_s2chk")
    a("L_s2go:")
    STAMP(11)
    a(f"ds_write_b64 v7, v[56:57] offset:{Y}")
    a("ds_read_b128 v[128:131], v9\nds_read_b128 v[132:135], v9 offset:64")
    if gf == 2: gf_store("L_nogf"); a("L_nogf:")
    a("s_waitcnt lgkmcnt(0)")
    for ct in range(3):
        for u in range(2):
            d = 136 + 4*ct; r = 64 + ct*8 + 4*u if ct < 2 else 128 + 4*u
            a(f"v_mfma_f32_16x16x32_bf16 v[{d}:{d+3}], v[{128+4*u}:{131+4*u}], v[{r}:{r+3}], {'0' if u == 0 else f'v[{d}:{d+3}]'}")
    if gf == 3: gf_store("L_nogf"); a("L_nogf:")
    a("s_cmp_lt_u32 s39, 3")
    a("v_cndmask_b32 v136, v136, v140, s[58:59]\nv_cndmask_b32 v137, v137, v141, s[58:59]")
    a(f"ds_write_b64 v10, v[136:137] offset:{T}\ns_mov_b64 exec, s[60:61]\nds_write_b64 v11, v[144:145] offset:{SS}\ns_mov_b64 exec, -1")
    if fine: STAMP(1)
    a("s_waitcnt lgkmcnt(0)\ns_barrier")
    a("s_cbranch_scc0 L_s2x" if gf == 1 else "s_cbranch_scc0 L_fin")
    if fine: STAMP(2)
    for k in range(4): a(f"ds_read_b128 v[{60+4*k}:{63+4*k}], v20 offset:{SS + 16*k}")
    a(f"ds_read_b64 v[76:77], v20 offset:{SS + 64}")
    for k in range(4): a(f"ds_read_b128 v[{128+4*k}:{131+4*k}], v8 offset:{T + 16*k}")
    a(f"ds_read_b64 v[144:145], v8 offset:{T + 64}")
    for k in range(4):
        a(f"s_waitcnt lgkmcnt({0 if fine else 9-k})"); pkadd(60 + 4*k, 62 + 4*k)
        if k == 1: pkadd(60, 64)
    a(f"s_waitcnt lgkmcnt({0 if fine else 5})")
    pkadd(68, 72); pkadd(60, 76); pkadd(60, 68)
    a("v_pk_mul_f32 v[60:61], v[60:61], v[38:39]\nv_fma_f32 v60, -v61, v61, v60\nv_max_f32 v60, 0, v60")
    a("v_fma_f32 v62, v60, v36, v37\nv_rsq_f32 v62, v62")
    a("s_waitcnt lgkmcnt(0)")
    for k in range(4): pkadd(128 + 4*k, 130 + 4*k)
    pkadd(128, 132); pkadd(136, 140); pkadd(128, 144); pkadd(128, 136)
    a("v_fma_f32 v128, -v61, v129, v128\nv_fma_f32 v128, v62, v128, v21")
    a("v_mul_f32 v129, v128, v128\nv_fma_f32 v129, v129, v35, v34\nv_mul_f32 v129, v128, v129")
    a("v_exp_f32 v129, v129\nv_add_f32 v129, 1.0, v129\nv_rcp_f32 v129, v129\nv_mul_f32 v128, v128, v129")
    a(f"v_mov_b32_dpp v129, v128 row_shl:1 {DPPF}")
    a("v_cvt_pk_bf16_f32 v128, v128, v129")
    for r in (1, 2, 3): a(f"v_mov_b32_dpp v{128+r}, v128 row_shl:{2*r} {DPPF}")
    if fine: STAMP(3)
    def fold(ln):
        b = 80 + 16*ln
        a(f"v_permlane16_swap_b32 v{b+8}, v{b+12}\nv_permlane16_swap_b32 v{b}, v{b+4}\nv_and_or_b32 v{b+1}, v{b+8}, v33, s63\nv_and_or_b32 v{b}, v{b}, v33, s62")
        a(f"global_store_dwordx2 v{28 + ln}, v[{b}:{b+1}], s[28:29] sc1")
    for t in range(12):
        a(f"v_mfma_f32_16x16x32_bf16 v[{80+4*t}:{83+4*t}], v[128:131], v[{80+4*t}:{83+4*t}], 0")
    for ln in range(3): fold(ln)
    STAMP(12)
    a("s_branch L_fin" if stamp else "s_endpgm")
    if gf == 1:
        a("L_s2x:"); gf_store("L_fin"); a("s_branch L_fin")
    a("L_s2chk:")
    for k in range(2):
        r = 40 + 4*k
        a(f"v_max3_u32 v31, v{r}, v{r+1}, v{r+2}\nv_max_u32 v31, v31, v{r+3}\nv_cmp_eq_u32 s[{94+2*k}:{95+2*k}], -1, v31")
    a("s_or_b64 s[44:45], s[94:95], s[96:97]\ns_cbranch_scc0 L_s2go")
    a("L_s2chk2:")
    a("s_sub_u32 s46, s46, 1\ns_cbranch_scc1 L_s2go")
    if s2sleep: a(f"s_sleep {s2sleep}")
    for k in range(2):
        a(f"s_mov_b64 exec, s[{94+2*k}:{95+2*k}]\ns_cbranch_execz L_s2r{k}")
        a(f"global_load_dwordx4 v[{40+4*k}:{43+4*k}], v{24+k}, s[28:29] sc1")
        a(f"L_s2r{k}:")
    a("s_mov_b64 exec, -1\ns_waitcnt vmcnt(0)")
    if tight:
        for k in range(2):
            r = 40 + 4*k
            a(f"v_max3_u32 v31, v{r}, v{r+1}, v{r+2}\nv_max_u32 v31, v31, v{r+3}\nv_cmp_eq_u32 s[{94+2*k}:{95+2*k}], -1, v31")
        a("s_or_b64 s[44:45], s[94:95], s[96:97]\ns_cbranch_scc1 L_s2chk2")
    a("s_branch L_s2poll")

    def red8(b):
        a(f"v_permlane32_swap_b32 v{b}, v{b+2}\nv_permlane32_swap_b32 v{b+1}, v{b+3}")
        pkadd(b, b + 2)
        a(f"v_permlane16_swap_b32 v{b}, v{b+1}\nv_add_f32 v{b}, v{b}, v{b+1}")
        a(f"v_add_f32_dpp v{b}, v{b}, v{b} row_ror:8 {DPPF}")
    a("L_s3s:")
    if stamp: a("s_mov_b32 s35, 0")
    a("s_sub_u32 s38, s38, 144\ns_cmp_ge_u32 s38, 36\ns_cbranch_scc1 L_fin")
    if stamp: a("s_mov_b32 s35, 3")
    a("s_lshr_b32 s3, s38, 2\ns_lshl_b32 s3, s3, 6\ns_and_b32 s44, s38, 1\ns_lshl_b32 s44, s44, 5\ns_add_u32 s3, s3, s44")
    a("v_and_b32 v4, 7, v0\nv_lshl_add_u32 v6, v4, 1, s3\nv_and_b32 v5, 16, v0\nv_add_u32 v6, v5, v6\nv_lshrrev_b32 v5, 5, v0\nv_add_u32 v6, v6, v5")
    a("v_lshlrev_b32 v6, 1, v6")
    a("s_bfe_u32 s3, s38, 0x10001\ns_mul_i32 s3, s3, 1152\nv_add_u32 v7, s3, v6")
    a("global_load_ushort v20, v7, s[4:5]\nglobal_load_ushort v21, v6, s[22:23]")
    a(f"s_lshl_b32 s3, s38, 6\ns_add_u32 s3, s3, {H2}")
    a(f"v_lshrrev_b32 v5, 3, v0\nv_mul_u32_u24 v5, {H2S}, v5\nv_lshl_add_u32 v5, v4, 3, v5\nv_add_u32 v5, s3, v5")
    a(f"s_mov_b32 s46, {SPIN}")
    a("L_s3hpoll:")
    a("global_load_dwordx2 v[28:29], v5, s[28:29] sc1\ns_waitcnt vmcnt(0)")
    a("v_max_u32 v8, v28, v29")
    a("v_cmp_eq_u32 vcc, -1, v8\ns_cbranch_vccz L_s3hgo")
    a(f"s_sleep {hsleep}\ns_sub_u32 s46, s46, 1\ns_cbranch_scc0 L_s3hpoll")
    a("L_s3hgo:")
    STAMP(10)
    a("v_lshlrev_b32 v24, 16, v28\nv_and_b32 v25, 0xffff0000, v28\nv_lshlrev_b32 v26, 16, v29\nv_and_b32 v27, 0xffff0000, v29")
    red8(24)
    a("v_lshlrev_b32 v20, 16, v20\nv_lshlrev_b32 v21, 16, v21\nv_add_f32 v20, v20, v24"); round1(20)
    a("v_add_f32 v20, v20, v21")
    a("s_cmp_eq_u32 s38, 0\ns_cbranch_scc0 L_noep")
    a(f"v_mov_b32 v41, s62\nv_mov_b32 v42, {EP}\ns_mov_b64 exec, 1")
    a("global_store_dword v42, v41, s[28:29] sc1\ns_mov_b64 exec, -1")
    a("L_noep:")
    a("s_and_b32 s62, s62, 0xfff")
    if egate:
        a(f"s_movk_i32 s3, {GF}" if gf else f"s_mul_i32 s3, s38, 18432\ns_add_u32 s3, s3, {H4}")
        a(f"v_lshl_add_u32 v5, v0, 7, s3\ns_mov_b32 s46, {SPIN}\ns_mov_b64 exec, {(1 << egate) - 1}")
        a("L_eg:")
        a("global_load_dwordx2 v[24:25], v5, s[28:29] sc1\ns_waitcnt vmcnt(0)")
        a("v_xor_b32 v25, 0x880, v25\nv_xor_b32 v24, s62, v24\nv_xor_b32 v25, s62, v25\nv_or_b32 v24, v24, v25\nv_lshlrev_b32 v24, 20, v24")
        a("v_cmp_eq_u32 vcc, 0, v24\ns_cbranch_vccnz L_egok\ns_sub_u32 s46, s46, 1\ns_cbranch_scc0 L_eg")
        a("L_egok:\ns_mov_b64 exec, -1")
    a("s_branch L_s3c")
    a("L_s3w:")
    if stamp: a("s_mov_b32 s35, 0")
    a("s_sub_u32 s38, s38, 144\ns_cmp_ge_u32 s38, 36\ns_cbranch_scc1 L_fin")
    if stamp: a("s_mov_b32 s35, 3")
    a("v_mov_b32 v7, 0")
    a("L_s3c:")
    a("s_xor_b32 s63, s62, 0x880")
    a(f"s_mul_i32 s3, s38, 18432\ns_lshl_b32 s44, s33, 11\ns_add_u32 s3, s3, s44\ns_add_u32 s3, s3, {H4}")
    a("v_lshl_add_u32 v1, v0, 4, s3")
    a("v_lshlrev_b32 v2, 2, v0\ns_lshl_b32 s3, s33, 8\nv_add_u32 v3, s3, v2")
    a(f"s_mov_b32 s46, {SPIN}")
    if h4pf == 3:
        a("s_cmp_eq_u32 s33, 0\ns_cbranch_scc1 L_nopf3")
        a(f"s_mul_i32 s3, s38, 18432\ns_sub_u32 s44, s33, 1\ns_mul_i32 s44, s44, 2304\ns_add_u32 s3, s3, s44\ns_add_u32 s3, s3, {H4}")
        a(f"v_min_u32 v4, 17, v0\nv_lshl_add_u32 v4, v4, 7, s3\nglobal_load_dword v19, v4, s[28:29]\ns_waitcnt vmcnt(0)\nglobal_load_dword v19, v4, s[28:29] sc1 nt")
        a("L_nopf3:")
    a("s_barrier")
    if s3d: a(f"s_sleep {s3d}")
    h4l = [f"global_load_dwordx4 v[{24+4*k}:{27+4*k}], v1, s[28:29] offset:{1024*k} sc1" for k in range(2)]
    if p3f: a(h4l[0]); a(h4l[1]); a("s_waitcnt vmcnt(0)\ns_branch L_h4c")
    ppoll("h4", [24, 28], h4l, p3, p3s, 8, tagged=32, init=not p3f)
    pkadd(32, 36); pkadd(34, 38)
    red8(32)
    a("L_s3go:")
    a(f"ds_write_b32 v3, v32 offset:{FIN}")
    a("s_cmp_eq_u32 s33, 0\ns_waitcnt lgkmcnt(0)\ns_barrier")
    a("s_cbranch_scc0 L_fin")
    for k in range(4): a(f"ds_read2st64_b32 v[{40+2*k}:{41+2*k}], v2 offset0:{FIN//256 + 2*k} offset1:{FIN//256 + 2*k + 1}")
    a(f"ds_read_b32 v48, v2 offset:{FIN + 2048}")
    STAMP(11)
    a("s_mov_b32 exec_lo, 0x00ff00ff\ns_mov_b32 exec_hi, 0x00ff00ff")
    a("s_waitcnt lgkmcnt(0)")
    pkadd(40, 42); pkadd(44, 46); a("v_add_f32 v48, v48, v20"); pkadd(40, 44)
    a("v_add_f32 v40, v40, v41\nv_add_f32 v40, v40, v48\nv_cvt_pk_bf16_f32 v40, v40, v40")
    a(f"global_store_short v7, v40, s[24:25] {outf}")
    a("L_fin:")
    if stamp:
        if isinstance(swave, str): a(f"s_cmp_eq_u32 s35, 2\ns_cselect_b32 s3, {swave[4:] or 1}, 0\ns_cmp_eq_u32 s33, s3\ns_cbranch_scc0 L_exit2")
        else: a(f"s_cmp_eq_u32 s33, {swave}\ns_cbranch_scc0 L_exit2")
        a("s_memrealtime s[90:91]\ns_waitcnt vmcnt(0)\ns_memrealtime s[92:93]")
        a("s_mov_b64 exec, 1\ns_waitcnt lgkmcnt(0)")
        a(f"s_lshl_b32 s3, s2, 7\ns_add_u32 s3, s3, {STAMP_OFF}\nv_mov_b32 v1, s3")
        a("v_mov_b32 v2, s35\nv_mov_b32 v3, s38\nglobal_store_dwordx2 v1, v[2:3], s[28:29] offset:120")
        for i in range(15):
            a(f"v_mov_b32 v2, s{64+2*i}\nv_mov_b32 v3, s{65+2*i}\nglobal_store_dwordx2 v1, v[2:3], s[28:29] offset:{8*i}")
    a("L_exit2:\ns_endpgm")
    if stamp:
        for key, lo in (("s_load_dword s62, s[28:29], 0", 1), ("s_add_u32 s8, s8, s3", 2)):
            i = L.index(key)
            L[i:i] = [f"s_mov_b64 s[{64+2*k}:{65+2*k}], 0" for k in range(lo, 15)]
    body = hazard.run(L)
    tab = []
    for p in table:
        start = 0
        for (role, ridx, n) in p:
            assert NMAX - NSKIP <= n <= NMAX
            start += n
            tab.append(start | (n << 8) | (role << 16) | (ridx << 24))
        assert start == 128, start
    out = f"""; Fused decode block: pre-LN -> q projection -> sliding-window GQA attention -> wo -> residual -> LN,LN -> MLP -> residual.
; One persistent launch, 256 workgroups x 9 waves (generated by a Python script from hand-written sequences).
; @launch grid=(256,1,1) block=(576,1,1) lds={LDS_SIZE}
.amdgcn_target "amdgcn-amd-amdhsa--gfx950"
.text
.globl {NAME}_kernel
.type L_front,@object
L_front:
.fill 768, 4, 0
.p2align 8
.type {NAME}_kernel,@function
{NAME}_kernel:
""" + "\n".join(body) + f"""
.p2align 7
.type L_table,@object
L_table:
""" + "\n".join(f".long {t:#x}" for t in tab) + f"""
.p2align 8
L_codeend:
.section .rodata,"a"
.p2align 6
.amdhsa_kernel {NAME}_kernel
  .amdhsa_next_free_vgpr 168
  .amdhsa_next_free_sgpr 102
  .amdhsa_accum_offset 168
  .amdhsa_group_segment_fixed_size 0
  .amdhsa_kernarg_size 104
  .amdhsa_user_sgpr_count 2
  .amdhsa_user_sgpr_kernarg_segment_ptr 1
  .amdhsa_system_sgpr_workgroup_id_x 1
  .amdhsa_float_denorm_mode_32 3
.end_amdhsa_kernel
"""
    return out
def gen(**kw):
    import subprocess, re
    lines = 100
    for _ in range(3):
        txt = gen1(lines, **kw)
        open("_g.s", "w").write(txt)
        subprocess.run(["clang", "-x", "assembler", "-target", "amdgcn-amd-amdhsa", "-mcpu=gfx950", "-c", "_g.s", "-o", "_g.o"], check=True)
        sym = subprocess.run(["llvm-objdump", "-t", "_g.o"], capture_output=True, text=True).stdout
        at = lambda n: int(re.search(r"^([0-9a-f]+) .*" + n + "$", sym, re.M).group(1), 16)
        end = at("L_codeend") - at("_kernel")
        assert at("L_end256") - at("_kernel") <= 256
        if end // 128 == lines: return txt
        lines = end // 128
    raise RuntimeError("size did not converge")
if __name__ == "__main__":
    open("k.s", "w").write(gen())
    open("ks.s", "w").write(gen(stamp=True))
```

```python
import sys, struct
import hazard
NAME = "sequential_preLN__sliding_block_cached__mixer_channel_mlp__decode"
def f2u(x): return struct.unpack("<I", struct.pack("<f", x))[0]

EP, CFL, FL, PR, H2, H4, FLF, H1, QP = 0x0, 0x400, 0x1000, 0x8000, 0x10000, 0x20000, 0x1e0000, 0x200000, 0x220000
FAR = 0x100000
SIDE = 0x2000
H4S = 49152
BST, BTK = 2304, 2560
NFAIL = 4
TAGMUL, TAGADD = 0x9E3779B1, 0x7F4A7C15
STAMP_OFF = 512 << 20
XN, Q, STATW, CNT, LV, CF, ONES, SS, ROLE, Y, T, FIN, OP, RED, XR, WQ, W = (
    0, 2304, 2816, 2944, 2976, 3072, 3200, 3328, 3600, 3840, 6144, 6144, 12288, 20480, 20480, 24576, 45056)
LDS_SIZE = W + 73728
NMAX = 18
KR, VR, WOF = 24, 96, 96
LOG2E = 1.4426950408889634

def mk_table(a=(13, 13), b=(17,)*6, last=(13, 13, 13, 18, 18, 18, 18, 17)):
    t = [[(1, 2*q, a[0]), (1, 2*q+1, a[1])] + [(0, 0, n) for n in b] for q in range(3)]
    t.append([(1, 6+i, last[i]) for i in range(3)] + [(0, 0, n) for n in last[3:]])
    return t

HEAD = f"""; Fused decode block:  h = x + Attn(LN(x)) ;  out = h + MLP(LN(LN(h)))      (B=2, D=576, 32/16 heads, window 4096)
;
; @launch grid=(256,1,1) block=(576,1,1) lds={LDS_SIZE}
"""

def gen1(code_lines, D=5, J=9, NSKIP=5, table=None, ntr=3, ntrs=4, xodd=True, ra=3, rb=5, hsleep=4, SPIN=1 << 18,
         stamp=False, swave=0, local=True, guess=None):
    table = table or mk_table()
    L = []
    def a(s):
        for x in s.split("\n"):
            x = x.strip()
            if x: L.append(x)
    def C(s): L.append("; " + s)
    def STAMP(i):
        if stamp: a(f"s_memrealtime s[{64+2*i}:{65+2*i}]")
    DPPF = "row_mask:0xf bank_mask:0xf"
    def row_sum(r, op="v_add_f32"):
        for k in (8, 4, 2, 1): a(f"{op}_dpp v{r}, v{r}, v{r} row_ror:{k} {DPPF}")
    def oct_red(r, op):
        for m in ("quad_perm:[1,0,3,2]", "quad_perm:[2,3,0,1]", "row_half_mirror"): a(f"{op}_dpp v{r}, v{r}, v{r} {m} {DPPF}")
    def round2(x, y, tmp):
        a(f"v_cvt_pk_bf16_f32 v{tmp}, v{x}, v{y}\nv_lshlrev_b32 v{x}, 16, v{tmp}\nv_and_b32 v{y}, 0xffff0000, v{tmp}")
    def round1(x): a(f"v_cvt_pk_bf16_f32 v{x}, v{x}, v{x}\nv_lshlrev_b32 v{x}, 16, v{x}")
    def pkadd(x, y, d=None):
        d = x if d is None else d
        a(f"v_pk_add_f32 v[{d}:{d+1}], v[{x}:{x+1}], v[{y}:{y+1}]")
    def mfma(d, x, y, acc, k=32):
        n = k // 8 - 1
        a(f"v_mfma_f32_16x16x{k}_bf16 v[{d}:{d+3}], v[{x}:{x+n}], v[{y}:{y+n}], " + ("0" if acc is None else f"v[{acc}:{acc+3}]"))
    def srd(base, nbytes, dst):
        a(f"s_mov_b32 s{dst}, s{base}\ns_mov_b32 s{dst+1}, s{base+1}\ns_mov_b32 s{dst+2}, {nbytes}\ns_mov_b32 s{dst+3}, 0x20000")
    def lds_wait(name, read, reg, any_, slp):
        a(f"s_mov_b32 s46, {SPIN*8}\nL_{name}w:\n{read}\ns_waitcnt lgkmcnt(0)")
        a(f"v_cmp_ne_u32 vcc, 0, v{reg}\ns_cbranch_vccnz L_{name}ok" if any_ else f"v_cmp_eq_u32 vcc, 0, v{reg}\ns_cbranch_vccz L_{name}ok")
        a(f"s_sleep {slp}\ns_sub_u32 s46, s46, 1\ns_cbranch_scc0 L_{name}w\nL_{name}ok:")
    def sel_masks(dst, tmp):
        a(f"v_and_b32 v{tmp}, 1, v0\nv_lshlrev_b32 v{tmp}, 4, v{tmp}\ns_mov_b32 s47, 0xffff\nv_lshlrev_b32 v{tmp}, v{tmp}, s47\nv_bfe_u32 v{tmp+1}, v0, 1, 2")
        for k in range(4): a(f"v_cmp_eq_u32 vcc, {k}, v{tmp+1}\nv_cndmask_b32 v{dst+k}, 0, v{tmp}, vcc")
    def tr_addr128(dst, tmp, base_s, perm=(0, 2, 1, 3)):
        a(f"v_lshrrev_b32 v{tmp}, 2, v0\nv_bfe_u32 v{tmp+1}, v0, 3, 2\nv_lshl_add_u32 v{tmp}, v{tmp}, 7, s{base_s}")
        a(f"v_lshl_add_u32 v{tmp}, v{tmp+1}, 5, v{tmp}\nv_and_b32 v{tmp+1}, 3, v0\nv_lshl_add_u32 v{dst}, v{tmp+1}, 3, v{tmp}")
        for ct in (1, 2, 3): a(f"v_xor_b32 v{dst+ct}, {perm[ct]*32}, v{dst}")
    def dma_chunk128(dst, tmp):
        a(f"v_lshrrev_b32 v{tmp}, 3, v0\nv_and_b32 v{dst}, 6, v{tmp}\nv_xor_b32 v{dst}, v{dst}, v0\nv_and_b32 v{dst}, 7, v{dst}\nv_lshlrev_b32 v{dst}, 4, v{dst}")
    def blk(d, t): a(f"s_lshr_b32 s{d}, s31, 1\ns_and_b32 s{t}, s31, 1\ns_lshl2_add_u32 s{d}, s{d}, s{t}\ns_lshl_b32 s{d}, s{d}, 12\ns_add_u32 s{d}, s{d}, {H2}")
    def vblk(d, x, t): a(f"v_and_b32 v{t}, 6, v{x}\nv_add_u32 v{d}, v{t}, v{x}\nv_lshlrev_b32 v{d}, 12, v{d}")
    def own_side(d): a(f"s_lshr_b32 s{d}, s30, s31\ns_and_b32 s{d}, s{d}, 1\ns_lshl_b32 s{d}, s{d}, 13")
    def word_tags():
        a("s_lshr_b32 s63, s62, 11\ns_xor_b32 s63, s63, s62\ns_and_b32 s63, s63, 0x7ff\ns_bitset1_b32 s63, 11\ns_and_b32 s62, s62, 0x7ff")
    def s2_dma(k):
        if k < 4:
            if k == 2: a("s_xor_b32 s51, s51, 2048\ns_add_u32 s48, s48, s56")
            a(f"s_add_u32 m0, s51, {(k & 1)*1024}\ns_add_u32 s45, s48, {(k & 1)*8*9216}")
            a(f"buffer_load_dwordx4 v6, s[40:43], s45 offen {'' if k < 2 else 'nt '}lds")
        else:
            a(f"s_add_u32 m0, s50, {36864 + (k-4)*1024}\ns_add_u32 s45, s49, {(k-4)*8*1152}")
            a("buffer_load_dwordx4 v7, s[52:55], s45 offen nt lds")
    def s2_setup():
        a(f"s_mul_i32 s48, s33, {64*9216}\ns_lshl_b32 s45, s38, 6\ns_add_u32 s48, s48, s45\ns_add_u32 s18, s18, s45\ns_addc_u32 s19, s19, 0")
        a(f"s_mul_i32 s49, s38, {32*1152}\ns_lshl_b32 s45, s33, 7\ns_add_u32 s49, s49, s45")
        a(f"s_bitcmp1_b32 s38, 0\ns_cselect_b32 s44, {32*9216}, 0\ns_cselect_b32 s51, 2048, 0\ns_add_u32 s48, s48, s44\ns_add_u32 s51, s51, s50")
        a(f"s_lshl_b32 s44, s44, 1\ns_sub_u32 s56, {32*9216}, s44")
    def s2_pre(t):
        srd(16, 576*4608*2, 40); srd(20, 4608*576*2, 52)
        a(f"s_lshl_b32 s50, s33, 12\ns_add_u32 s50, s50, {W}")
        a(f"v_lshrrev_b32 v6, 3, v0\nv_and_b32 v{t+1}, 2, v6\nv_bfe_u32 v{t}, v0, 2, 1\nv_lshl_add_u32 v6, v{t}, 4, v6\nv_mul_u32_u24 v6, 9216, v6")
        a(f"v_xor_b32 v{t}, v{t+1}, v0\nv_and_b32 v{t}, 3, v{t}\nv_lshl_add_u32 v6, v{t}, 4, v6")
        dma_chunk128(7, t)
        a(f"v_mul_u32_u24 v{t}, 1152, v{t}\nv_add_u32 v7, v7, v{t}")
        a(f"v_bfe_u32 v{t}, v0, 2, 1\nv_and_b32 v21, 3, v0\nv_lshl_add_u32 v21, v{t}, 4, v21\nv_lshrrev_b32 v{t}, 4, v0\nv_lshl_add_u32 v21, v{t}, 2, v21\nv_lshlrev_b32 v21, 1, v21")
    ends = []
    for p in table:
        e = w = 0
        for i, (_, _, n) in enumerate(p):
            assert NMAX - NSKIP <= n <= NMAX
            e += n; w |= e << (8 * i)
        assert e == 128
        ends.append(w)
    assert ends[0] == ends[1] == ends[2]

    C("================ entry (first 256 bytes: everything up to the first loads)")
    a("s_load_dwordx16 s[4:19], s[0:1], 0\ns_load_dwordx2 s[28:29], s[0:1], 96")
    STAMP(0)
    a("v_readfirstlane_b32 s33, v0")
    a("s_cmpk_ge_u32 s2, 0x100\ns_cbranch_scc1 L_exit")
    a("s_getpc_b64 s[48:49]\nL_pc:")
    a("s_lshr_b32 s32, s2, 3")
    a("s_cmp_eq_u32 s33, 0\ns_cbranch_scc1 L_svc0")
    C("pull the code into L2 (one lane per 128-B line, half of the code per WG)")
    a(f"s_and_b32 s3, s32, 1\ns_mulk_i32 s3, {code_lines*64}\ns_addk_i32 s3, -8192")
    a(f"v_min_u32 v1, {64 + code_lines//2-1}, v0\nv_lshl_add_u32 v1, v1, 7, s3")
    a("global_load_dword v7, v1, s[48:49]")
    C("wq slice of this WG (144 rows x 64 columns) -> LDS")
    a("v_and_b32 v0, 63, v0")
    dma_chunk128(3, 4)
    a("v_lshl_add_u32 v3, v4, 13, v3")
    a(f"s_lshl4_add_u32 m0, s33, {WQ - 1024}")
    a("s_and_b32 s31, s2, 7\ns_lshr_b32 s37, s32, 4\ns_lshl1_add_u32 s37, s31, s37")
    a("s_bfe_u32 s44, s32, 0x20002\ns_mulk_i32 s44, 1152\ns_add_u32 s44, s44, s33\ns_addk_i32 s44, -64")
    a("s_and_b32 s45, s32, 3\ns_lshl2_add_u32 s45, s37, s45\ns_lshl3_add_u32 s44, s44, s45\ns_lshl_b32 s44, s44, 7")
    a("v_add_u32 v3, s44, v3\ns_mov_b32 s44, 0x80000\nv_add_u32 v4, s44, v3\nv_add_u32 v5, s44, v4")
    a("s_waitcnt lgkmcnt(0)")
    STAMP(1)
    a("global_load_lds_dwordx4 v3, s[10:11] nt")
    a("s_addk_i32 m0, 0x2000\ns_cmpk_lt_u32 s33, 192")
    a("global_load_lds_dwordx4 v4, s[10:11] nt")
    a("s_cbranch_scc0 L_stream")
    a("s_addk_i32 m0, 0x2000")
    a("global_load_lds_dwordx4 v5, s[10:11] nt")
    a("s_branch L_stream")
    a("L_end256:\n.p2align 8")
    C("---- service wave, first part: x, LDS flags, locality probe")
    a("L_svc0:")
    a("s_setprio 3\nv_mul_u32_u24 v2, 36, v0\ns_waitcnt lgkmcnt(0)")
    a("global_load_dwordx4 v[10:13], v2, s[4:5]\nglobal_load_dwordx4 v[14:17], v2, s[4:5] offset:16\nglobal_load_dword v18, v2, s[4:5] offset:32")
    a("v_lshlrev_b32 v40, 2, v0\nv_mov_b32 v56, -1\nv_mov_b32 v57, -1\nv_mov_b32 v3, 0\nv_mov_b32 v4, 0x3f803f80")
    a(f"ds_write2st64_b32 v40, v56, v57 offset0:{Q//256} offset1:{Q//256+1}")
    a(f"ds_write2st64_b32 v40, v3, v4 offset0:{STATW//256} offset1:{CF//256}")
    C("latency of one private workspace line: even WGs probe one memory half, odd WGs the other (the value is not used)")
    a("s_and_b32 s44, s32, 3\ns_lshr_b32 s3, s32, 2\ns_lshl3_add_u32 s44, s44, s3\ns_and_b32 s3, s2, 7\ns_lshl3_add_u32 s44, s44, s3")
    a(f"s_lshl_b32 s44, s44, 7\ns_add_u32 s44, s44, {PR}\ns_memtime s[46:47]\ns_waitcnt lgkmcnt(0)")
    a("s_load_dword s3, s[28:29], s44")
    a("s_barrier")
    a("s_waitcnt lgkmcnt(0)\ns_memtime s[44:45]\ns_load_dwordx8 s[20:27], s[0:1], 64")
    a("s_branch L_service")

    C("================ stream waves: a step is 32 keys (8 KB of K, 8 KB of V), one 1-KB unit (4 keys) per wave")
    a("L_stream:")
    a(f"s_mov_b32 s44, {ends[0] & 0xffffffff:#x}\ns_mov_b32 s45, {ends[0] >> 32:#x}\ns_cmp_ge_u32 s32, 24")
    a(f"s_cselect_b32 s44, {ends[3] & 0xffffffff:#x}, s44\ns_cselect_b32 s45, {ends[3] >> 32:#x}, s45")
    a("s_lshl_b32 s46, s32, 3\ns_lshr_b64 s[44:45], s[44:45], s46")
    a(f"s_mul_i32 s45, s31, {ra}\ns_add_u32 s44, s44, s45\ns_lshr_b32 s45, s32, 3\ns_mul_i32 s45, s45, {rb}\ns_add_u32 s44, s44, s45")
    a(f"s_add_u32 s44, s44, {128 + NSKIP - NMAX}\ns_and_b32 s44, s44, 127\ns_lshl_b32 s44, s44, 13")
    a("s_lshl4_add_u32 s46, s33, -1024\ns_add_u32 s46, s46, s44")
    a("v_bfe_u32 v5, v0, 2, 2\nv_lshrrev_b32 v4, 4, v0\nv_and_b32 v1, 3, v0")
    a("v_lshl_add_u32 v1, v1, 4, s46\nv_lshl_add_u32 v1, v4, 6, v1\nv_lshl_add_u32 v1, v5, 8, v1")
    a("s_and_b32 s3, s32, 8\ns_lshl1_add_u32 s3, s3, s37\ns_lshl3_add_u32 s3, s3, 7\ns_lshl_b32 s3, s3, 20")
    a("s_add_u32 s6, s6, s3\ns_addc_u32 s7, s7, 0\ns_mov_b32 s57, 0xfffff")
    a("s_barrier")
    issued = [1]
    def throttle():
        n = issued[0]; issued[0] += 1
        if n >= D: a(f"s_waitcnt vmcnt({D-1})")
        if n > D and xodd: a(f"s_cmp_eq_u32 s63, 0\ns_cbranch_scc0 L_x{n}\ns_waitcnt vmcnt({D-2})\nL_x{n}:")
    def load_unit(kind, t):
        base, areg, sb = (KR, 1, "s[6:7]") if kind == "K" else (VR, 2, "s[8:9]")
        if t < NSKIP: a(f"s_cmp_ge_u32 s34, {NMAX-t}\ns_cbranch_scc0 L_skip{kind}{t}")
        throttle()
        a(f"global_load_dwordx4 v[{base+4*t}:{base+4*t+3}], v{areg}, {sb} nt")
        if t < NSKIP: a(f"L_skip{kind}{t}:")
        if kind == "K" and t == NMAX - 1: a(f"v_subrev_u32 v1, {(NMAX-1)*8192}, v1\nv_and_b32 v1, s57, v1")
        elif t != (NMAX - 1 if kind == "V" else NSKIP - 1): a(f"v_add_u32 v{areg}, 0x2000, v{areg}\nv_and_b32 v{areg}, s57, v{areg}")
    for t in list(range(NSKIP, NMAX)) + list(range(NSKIP)):
        load_unit("K", t)
        if t == NSKIP + D - 2:
            C("set-up in the shadow of the first loads")
            a("s_lshl2_add_u32 s47, s32, L_table-L_pc")
            a("s_load_dword s30, s[48:49], s47\ns_load_dwordx8 s[20:27], s[0:1], 64")
            a("s_lshr_b32 s33, s33, 6\ns_sub_u32 s39, s33, 1")
            a(f"s_sub_u32 s46, s46, {NSKIP*8192}\ns_and_b32 s46, s46, s57\nv_lshl_add_u32 v2, v0, 4, s46")
            a("s_add_u32 s8, s8, s3\ns_addc_u32 s9, s9, 0")
            for tt in range(NSKIP):
                for k in range(4): a(f"v_mov_b32 v{KR+4*tt+k}, 0\nv_mov_b32 v{VR+4*tt+k}, 0")
            sel_masks(12, 3)
            a("v_bfe_u32 v3, v0, 3, 1\nv_lshrrev_b32 v4, 4, v0\nv_and_b32 v20, 3, v0")
            a("v_lshlrev_b32 v20, 4, v20\nv_lshl_add_u32 v20, v4, 6, v20\nv_lshl_add_u32 v20, v3, 8, v20")
            if xodd:
                C("even dies keep one load less in flight (evens out the bandwidth share of the dies)")
                a("s_getreg_b32 s63, hwreg(HW_REG_XCC_ID)\ns_and_b32 s63, s63, 1")
            a("s_lshl_b32 s3, s39, 2\nv_mov_b32 v3, s3\nv_mov_b32 v4, 1")
            a("s_waitcnt lgkmcnt(0)")
            a("s_bfe_u32 s34, s30, 0x50008\ns_bfe_u32 s35, s30, 0x20010\ns_bfe_u32 s36, s30, 0x50018")
        if t == NSKIP + D - 1:
            STAMP(2)
            a(f"ds_write_b32 v3, v4 offset:{CNT}")
        if t == NMAX - 1: STAMP(3)
    C("S1: this wave's 64 rows x 64 columns of wo -> LDS")
    a("s_cmp_eq_u32 s35, 1\ns_cbranch_scc0 L_nowo")
    srd(12, 4096*576*2, 40)
    dma_chunk128(3, 4)
    a("v_and_b32 v4, 3, v4\nv_lshrrev_b32 v5, 5, v0\nv_lshl_add_u32 v4, v5, 4, v4\nv_mul_u32_u24 v4, 1152, v4\nv_add_u32 v3, v3, v4")
    a("s_lshl_b32 s44, s31, 9\ns_lshr_b32 s45, s39, 1\ns_lshl_b32 s45, s45, 7\ns_add_u32 s44, s44, s45")
    a("s_and_b32 s45, s39, 1\ns_lshl2_add_u32 s44, s45, s44\ns_mul_i32 s44, s44, 1152\ns_lshl_b32 s45, s36, 7\ns_add_u32 s44, s44, s45")
    a(f"s_lshl_b32 s47, s39, 13\ns_add_u32 s47, s47, {W}")
    for k in range(8):
        u, eh, gh = k >> 2, (k >> 1) & 1, k & 1
        a(f"s_add_u32 s45, s44, {(64*u + 32*gh + 8*eh)*1152}\ns_add_u32 m0, s47, {k*1024}\ns_waitcnt vmcnt({D-1})")
        a("buffer_load_dwordx4 v3, s[40:43], s45 offen nt lds")
    a("L_nowo:")
    s2_pre(3)
    a("s_lshl_b32 s3, s39, 2\nv_mov_b32 v1, s3")
    assert J >= NSKIP + D - 1
    for t in range(J): load_unit("V", t)
    nextv = [J]
    def more_v():
        if nextv[0] < NMAX: load_unit("V", nextv[0]); nextv[0] += 1
    for t in range(NSKIP): a(f"s_cmp_ge_u32 s34, {NMAX-t}\ns_cselect_b32 s{94+t}, 0, 0xff800000")
    a(f"s_mov_b32 s61, {f2u(128**-0.5)}\ns_mov_b32 s62, {f2u(LOG2E)}\ns_mov_b32 s46, {SPIN*8}")
    more_v()
    STAMP(4)
    C("all K has landed; wait for q, then scores, softmax numerators and the PV selector operands (in place of K)")
    a("L_qw:")
    a(f"ds_read_b128 v[8:11], v20 offset:{Q}\ns_waitcnt lgkmcnt(0)")
    a("v_max3_u32 v3, v8, v9, v10\nv_max_u32 v3, v3, v11\nv_cmp_eq_u32 vcc, -1, v3\ns_cbranch_vccz L_qok")
    a("s_sleep 1\ns_sub_u32 s46, s46, 1\ns_cbranch_scc0 L_qw")
    a("L_qok:")
    STAMP(5)
    k_ = lambda t, r=0: KR + 4*t + r
    def diag(t):
        a(f"v_mov_b32_dpp v{k_(t)}, v{k_(t)} quad_perm:[0,0,0,0] {DPPF}")
        for r in (1, 2, 3): a(f"v_add_f32_dpp v{k_(t)}, v{k_(t,r)}, v{k_(t)} quad_perm:[{r},{r},{r},{r}] {DPPF}")
    for t in range(NMAX + 3):
        if t < NMAX: mfma(k_(t), k_(t), 8, None)
        if t >= 3: diag(t - 3)
    more_v()
    for t in range(0, NMAX, 2):
        round2(k_(t), k_(t+1), 3)
        a(f"v_mul_f32 v{k_(t)}, s61, v{k_(t)}\nv_mul_f32 v{k_(t+1)}, s61, v{k_(t+1)}")
        round2(k_(t), k_(t+1), 3)
    for t in range(NSKIP): a(f"v_add_f32 v{k_(t)}, s{94+t}, v{k_(t)}")
    a(f"v_max_f32 v4, v{k_(0)}, v{k_(1)}")
    for t in range(2, NMAX, 2): a(f"v_max3_f32 v4, v{k_(t)}, v{k_(t+1)}, v4")
    more_v()
    for sw in (16, 32): a(f"v_mov_b32 v3, v4\nv_permlane{sw}_swap_b32 v4, v3\nv_max_f32 v4, v4, v3")
    a("v_mul_f32 v4, s62, v4\nv_mov_b32 v5, 0")
    for t in range(NMAX): a(f"v_fma_f32 v{k_(t)}, v{k_(t)}, s62, -v4")
    for t in range(NMAX): a(f"v_exp_f32 v{k_(t)}, v{k_(t)}")
    for t in range(NMAX): a(f"v_add_f32 v5, v5, v{k_(t)}\nv_cvt_pk_bf16_f32 v{k_(t)}, v{k_(t)}, v{k_(t)}")
    for sw in (16, 32): a(f"v_mov_b32 v3, v5\nv_permlane{sw}_swap_b32 v5, v3\nv_add_f32 v5, v5, v3")
    a("v_bfe_u32 v3, v0, 3, 1\ns_lshl_b32 s3, s39, 3\nv_lshl_add_u32 v3, v3, 6, s3")
    a(f"ds_write_b64 v3, v[4:5] offset:{STATW}")
    STAMP(6)
    more_v()
    for t in range(NMAX):
        for r in (3, 2, 1, 0): a(f"v_and_b32 v{k_(t,r)}, v{12+r}, v{k_(t)}")
    a("s_lshl_b32 s3, s39, 10\nv_lshl_add_u32 v3, v0, 4, s3")
    C("PV as the V units land")
    def pv(t): mfma(16, k_(t), VR + 4*t, 16 if t else None)
    done = 0
    while nextv[0] < NMAX:
        n = nextv[0]; more_v()
        if n == NMAX - 1: a(f"ds_write_b32 v1, v5 offset:{LV}")
        while done <= n - D: pv(done); done += 1
    def drain(done):
        while done < NMAX:
            a(f"s_waitcnt vmcnt({min(NMAX-1-done, D-1)})")
            hi = max(done, NMAX - D)
            while done <= hi: pv(done); done += 1
        STAMP(7)
        a(f"ds_write_b128 v3, v[16:19] offset:{OP}\ns_waitcnt lgkmcnt(0)\ns_barrier")
        STAMP(8)
    assert done >= 8
    a("s_cmp_eq_u32 s35, 1\ns_cbranch_scc1 L_s1pre")
    drain(done)
    a("s_branch L_dyn")
    C("================ S1 workers: wave = (head, half of the head dim); rows of the MFMA are (batch, key split)")
    a("L_s1pre:")
    blk(44, 3)
    a(f"s_lshr_b32 s3, s39, 1\ns_lshl_b32 s3, s3, 6\ns_add_u32 s3, s3, s44\ns_add_u32 s3, s3, {BST}")
    a("v_and_b32 v1, 48, v0\nv_add_u32 v1, s3, v1")
    a(f"s_lshl3_add_u32 s3, s31, s39\ns_lshl_b32 s3, s3, 11\ns_add_u32 s3, s3, {H1}\nv_lshl_add_u32 v2, v0, 4, s3")
    tr_addr128(4, 8, 47)
    for u in range(2):
        for ct in range(4):
            for eh in range(2):
                r = WOF + (u*4 + ct)*4 + 2*eh
                a(f"ds_read_b64_tr_b16 v[{r}:{r+1}], v{4+ct} offset:{(32*u + 16*eh)*128}")
    a(f"s_lshl_b32 s3, s39, 9\nv_lshl_add_u32 v10, v0, 3, s3\nv_mov_b32 v11, 0\ns_mov_b32 s46, {SPIN}")
    drain(done)
    a(f"ds_read_b32 v4, v11 offset:{ROLE + 8}")
    a("global_load_dwordx4 v[20:23], v1, s[28:29] sc1")
    a("s_waitcnt lgkmcnt(0)\nv_add_u32 v2, v2, v4")
    h1_loads = "global_load_dwordx4 v[24:27], v2, s[28:29] sc1\nglobal_load_dwordx4 v[28:31], v2, s[28:29] offset:1024 sc1"
    a(h1_loads)
    a("s_waitcnt vmcnt(2)")
    C("weights of the eight key splits from their log-sum-exp values")
    a("L_fw:")
    a("v_max3_u32 v8, v20, v21, v22\nv_max_u32 v8, v8, v23\nv_cmp_eq_u32 vcc, -1, v8\ns_cbranch_vccnz L_fretry")
    a("L_fok:")
    a("v_max3_f32 v8, v20, v21, v22\nv_max_f32 v8, v8, v23\nv_mov_b32 v9, v8\nv_permlane16_swap_b32 v8, v9\nv_max_f32 v8, v8, v9")
    for r in range(4): a(f"v_sub_f32 v{20+r}, v{20+r}, v8")
    for r in range(4): a(f"v_exp_f32 v{20+r}, v{20+r}")
    a("v_add_f32 v8, v20, v21\nv_add_f32 v9, v22, v23\nv_add_f32 v8, v8, v9\nv_mov_b32 v9, v8\nv_permlane16_swap_b32 v8, v9\nv_add_f32 v8, v8, v9")
    a("v_rcp_f32 v8, v8")
    for r in range(4): a(f"v_mul_f32 v{20+r}, v8, v{20+r}")
    a(f"s_mov_b32 s46, {SPIN}")
    STAMP(9)
    a("L_s1poll:\ns_waitcnt vmcnt(0)")
    a("v_max3_u32 v8, v24, v25, v26\nv_max3_u32 v9, v27, v28, v29\nv_max3_u32 v8, v30, v31, v8\nv_max_u32 v8, v8, v9")
    a("v_cmp_eq_u32 vcc, -1, v8\ns_cbranch_vccnz L_s1retry")
    a("L_s1go:")
    STAMP(10)
    for ct in range(4):
        for u in range(2): mfma(32 + 4*ct, 24 + 4*u, WOF + (u*4 + ct)*4, 32 + 4*ct if u else None)
    def scale(ct):
        d = 32 + 4*ct
        a(f"v_pk_mul_f32 v[{d}:{d+1}], v[{d}:{d+1}], v[20:21]\nv_pk_fma_f32 v[{d}:{d+1}], v[{d+2}:{d+3}], v[22:23], v[{d}:{d+1}]\nv_add_f32 v{d}, v{d}, v{d+1}")
    scale(0); scale(1); scale(2)
    a("v_permlane16_swap_b32 v32, v36")
    scale(3)
    a("v_add_f32 v32, v32, v36\nv_permlane16_swap_b32 v40, v44\nv_add_f32 v33, v40, v44")
    a(f"ds_write_b64 v10, v[32:33] offset:{RED}")
    STAMP(11)
    a("s_waitcnt lgkmcnt(0)\ns_barrier")
    if stamp: a("s_branch L_fin")
    a("L_exit:\ns_endpgm")
    a("L_s1retry:\ns_sub_u32 s46, s46, 1\ns_cbranch_scc1 L_s1go\ns_mov_b64 exec, vcc")
    a(h1_loads)
    a("s_mov_b64 exec, -1\ns_branch L_s1poll")
    a("L_fretry:\ns_sub_u32 s46, s46, 1\ns_cbranch_scc1 L_fok")
    a("global_load_dwordx4 v[20:23], v1, s[28:29] sc1\ns_waitcnt vmcnt(0)\ns_branch L_fw")

    C("================ service wave")
    a("L_service:")
    a("s_waitcnt lgkmcnt(0)\ns_sub_u32 s50, s44, s46\ns_min_u32 s50, s50, 0xfff\ns_lshl_b32 s50, s50, 4")
    a("s_lshl2_add_u32 s47, s32, L_table-L_pc")
    a(f"s_load_dword s30, s[48:49], s47\ns_load_dword s62, s[28:29], {EP}")
    a("s_and_b32 s31, s2, 7\ns_lshr_b32 s37, s32, 4\ns_lshl1_add_u32 s37, s31, s37")
    C("sentinels: 512 B of the group's o hand-off block per WG; WG 2 also the group's global block (both sides)")
    blk(56, 3)
    a(f"s_lshl_b32 s44, s31, 5\ns_add_u32 s44, s44, s32\ns_lshl_b32 s3, s44, 9\ns_add_u32 s3, s3, {H1}\nv_lshl_add_u32 v19, v0, 3, s3")
    a("global_store_dwordx2 v19, v[56:57], s[28:29]")
    a("s_bfe_u32 s38, s32, 0x20002\ns_and_b32 s39, s32, 3")
    a(f"s_getreg_b32 s51, hwreg(HW_REG_XCC_ID)\ns_and_b32 s51, s51, 15\ns_movk_i32 s57, {Q}")
    a(f"s_mov_b32 s3, {WQ}"); tr_addr128(44, 41, 3, (0, 1, 2, 3))
    a("v_bfe_u32 v4, v0, 3, 1\nv_mul_u32_u24 v4, 1152, v4\nv_lshrrev_b32 v41, 4, v0\nv_lshl_add_u32 v4, v41, 3, v4")
    a("s_mul_i32 s3, s38, 288\nv_add_u32 v4, s3, v4")
    a("v_and_b32 v3, 16, v0\nv_cmp_ne_u32 s[58:59], 0, v3")
    a(f"s_lshl2_add_u32 s3, s37, s38\ns_lshl3_add_u32 s3, s3, s39\ns_lshl_b32 s3, s3, 8\ns_add_u32 s3, s3, {QP}")
    a("v_and_b32 v43, 31, v0\nv_lshl_add_u32 v43, v43, 3, s3\nv_lshrrev_b32 v3, 5, v0\nv_lshl_add_u32 v43, v3, 10, v43")
    a("v_and_b32 v6, 28, v40")
    a("s_cmp_eq_u32 s32, 2\ns_cbranch_scc0 L_c1")
    a("v_mov_b32 v58, -1\nv_mov_b32 v59, -1\nv_lshl_add_u32 v3, v0, 4, s56")
    for k in range(3): a(f"global_store_dwordx4 v3, v[56:59], s[28:29] offset:{1024*k} sc1")
    a(f"v_add_u32 v3, {SIDE}, v3")
    for k in range(3): a(f"global_store_dwordx4 v3, v[56:59], s[28:29] offset:{1024*k} sc1")
    a("s_waitcnt vmcnt(7)\ns_branch L_c1b")
    a("L_c1:\ns_waitcnt vmcnt(1)\nL_c1b:")
    C("LayerNorm(x) with the reference's bf16 roundings: 32 lanes x 18 values per batch row")
    for r in range(9):
        a(f"v_lshlrev_b32 v{20+2*r}, 16, v{10+r}\nv_and_b32 v{21+2*r}, 0xffff0000, v{10+r}\nds_write_b32 v2, v{10+r} offset:{XR + 4*r}")
    pkadd(20, 22, 38)
    for r in range(2, 9): pkadd(38, 20 + 2*r)
    a("v_add_f32 v38, v38, v39")
    def half_sum(r, tmp):
        row_sum(r); a(f"v_mov_b32 v{tmp}, v{r}\nv_permlane16_swap_b32 v{r}, v{tmp}\nv_add_f32 v{r}, v{r}, v{tmp}")
    half_sum(38, 39)
    a(f"v_mul_f32 v38, {f2u(-1/576)}, v38\nv_mov_b32 v39, v38")
    for r in range(9):
        pkadd(20 + 2*r, 38, 10)
        a("v_pk_mul_f32 v[12:13], v[10:11], v[10:11]" if r == 0 else "v_pk_fma_f32 v[12:13], v[10:11], v[10:11], v[12:13]")
    a("v_add_f32 v42, v12, v13")
    half_sum(42, 41)
    a(f"v_mul_f32 v42, {f2u(1/576)}, v42")
    round2(38, 42, 41)
    a(f"v_mov_b32 v39, v38\nv_add_f32 v42, {f2u(1e-5)}, v42"); round1(42)
    a("v_sqrt_f32 v42, v42"); round1(42)
    a("v_rcp_f32 v10, v42\nv_mov_b32 v11, v10")
    for r in range(9):
        x, y = 20 + 2*r, 21 + 2*r
        pkadd(x, 38); round2(x, y, 41)
        a(f"v_pk_mul_f32 v[{x}:{y}], v[{x}:{y}], v[10:11]\nv_cvt_pk_bf16_f32 v{x}, v{x}, v{y}\nds_write_b32 v2, v{x} offset:{XN + 4*r}")
    C("partial q (144 of 576 rows, 64 columns, both batch rows)")
    lds_wait("wq", f"ds_read_b32 v3, v6 offset:{CNT}", 3, False, 1)
    STAMP(1)
    for v in range(9): a(f"ds_read_b64 v[{20+2*v}:{21+2*v}], v4 offset:{XN + 32*v}")
    a(f"s_mul_i32 s63, s62, {TAGMUL}\ns_add_u32 s63, s63, {TAGADD}")
    a("s_add_u32 s62, s62, 1\ns_and_b32 s60, s62, 15\ns_xor_b32 s61, s60, 8")
    a("s_bfe_u32 s35, s30, 0x20010\ns_bfe_u32 s36, s30, 0x50018")
    for ct in range(4):
        for v in range(9):
            r = 64 + (ct*9 + v)*2
            a(f"ds_read_b64_tr_b16 v[{r}:{r+1}], v{44+ct} offset:{2048*v}")
    a("s_waitcnt lgkmcnt(0)")
    for v in range(0, 9, 2):
        for ct in range(4): mfma(140 + 4*ct, 20 + 2*v, 64 + (ct*9 + v)*2, 140 + 4*ct if v else None, 32 if v < 8 else 16)
    C("publish it (4 tag bits in every word) and this WG's flag {die id | probe latency, launch tag}: plain stores")
    a("v_mov_b32 v23, s63\nv_mov_b32 v22, -16")
    a("v_cndmask_b32 v46, v140, v144, s[58:59]\nv_cndmask_b32 v47, v148, v152, s[58:59]")
    a("v_add_u32 v46, 8, v46\nv_add_u32 v47, 8, v47\nv_and_or_b32 v46, v46, v22, s60\nv_and_or_b32 v47, v47, v22, s61")
    a("s_or_b32 s50, s50, s51\nv_mov_b32 v22, s50")
    a(f"s_lshl3_add_u32 s3, s44, {FL}\nv_mov_b32 v4, s3\ns_lshl_b32 s3, s44, 6\ns_add_u32 s3, s3, {FLF}\nv_mov_b32 v27, s3")
    a("s_waitcnt vmcnt(0)")
    a("global_store_dwordx2 v43, v[46:47], s[28:29]")
    a("s_mov_b64 exec, 1\nglobal_store_dwordx2 v4, v[22:23], s[28:29]\ns_mov_b64 exec, -1")
    STAMP(2)
    a(f"v_add_u32 v43, {FAR}, v43")
    a(f"s_lshl_b32 s3, s37, 13\ns_and_b32 s46, s32, 15\ns_lshl4_add_u32 s3, s46, s3\ns_add_u32 s3, s3, {H1}")
    a("v_lshrrev_b32 v8, 1, v0\nv_lshl_add_u32 v8, v8, 8, s3\nv_and_b32 v9, 1, v0\nv_lshl_add_u32 v8, v9, 3, v8")
    a("s_lshl_b32 s3, s36, 8\ns_add_u32 s3, s3, s56\nv_lshl_add_u32 v5, v0, 2, s3")
    a(f"s_and_b32 s3, s32, 16\ns_lshl1_add_u32 s46, s3, s46\ns_lshl2_add_u32 s46, s46, s56\ns_add_u32 s46, s46, {BST}")
    a("v_bfe_u32 v9, v0, 3, 1\nv_lshl_add_u32 v9, v9, 6, s46")
    a(f"s_bfe_u32 s45, s32, 0x10003\ns_lshl3_add_u32 s44, s37, s45\ns_lshl_b32 s44, s44, 10\ns_add_u32 s44, s44, {QP + 4096}\nv_lshl_add_u32 v44, v0, 4, s44")
    a(f"s_lshl_b32 s3, s31, 8\ns_add_u32 s3, s3, {FL}\nv_and_b32 v45, 31, v0\nv_lshl_add_u32 v45, v45, 3, s3")
    a("s_waitcnt vmcnt(0)\ns_mov_b32 s46, 0")
    def announce():
        a("global_store_dwordx2 v43, v[46:47], s[28:29] sc1\ns_waitcnt vmcnt(0)")
        a("s_mov_b64 exec, 1\nglobal_store_dwordx2 v27, v[22:23], s[28:29] sc1\ns_mov_b64 exec, -1")
    STAMP(3)
    C("collect q (4 partials of this batch row, both heads) and the group's flags")
    a("L_qpoll:")
    a("global_load_dwordx2 v[80:81], v45, s[28:29] sc1")
    for k in range(4): a(f"global_load_dwordx4 v[{64+4*k}:{67+4*k}], v44, s[28:29] offset:{2048*k - 4096} sc1")
    a("s_waitcnt vmcnt(0)")
    for k in range(16): a(f"v_xor_b32 v{64+k}, s{60 + (k & 1)}, v{64+k}")
    a("v_or_b32 v20, v64, v65")
    for k in range(1, 8): a(f"v_or3_b32 v20, v20, v{64+2*k}, v{65+2*k}")
    a("v_and_b32 v20, 15, v20\nv_cmp_ne_u32 vcc, 0, v20\ns_cbranch_vccz L_qgo")
    a(f"s_add_u32 s46, s46, 1\ns_cmp_lt_u32 s46, {NFAIL}\ns_cbranch_scc1 L_qpoll")
    a(f"s_cmp_lt_u32 s46, {SPIN}\ns_cbranch_scc1 L_qslow")
    a("L_qgo:")
    pkadd(64, 68); pkadd(66, 70); pkadd(72, 76); pkadd(74, 78); pkadd(64, 72); pkadd(66, 74)
    a("v_cvt_pk_bf16_f32 v20, v64, v66\nv_cvt_pk_bf16_f32 v21, v65, v67")
    a("v_and_b32 v4, 0xc0, v40\nv_add3_u32 v4, v4, v40, s57\nds_write2_b32 v4, v20, v21 offset0:0 offset1:16")
    STAMP(4)
    a(f"s_lshl_b32 s3, s31, 11\ns_add_u32 s3, s3, {FLF}\nv_and_b32 v26, 31, v0\nv_lshl_add_u32 v26, v26, 6, s3")
    s2_pre(2)
    sel_masks(12, 2)
    a("s_mov_b32 s46, 0\ns_mov_b32 s34, 0")
    if not local: a("s_branch L_far")
    C("all 32 flags present and on this die -> near mode; a flag from another die -> far mode")
    a("L_fpoll:")
    a("v_and_b32 v2, 15, v80\nv_cmp_ne_u32 s[44:45], s63, v81\nv_cmp_ne_u32 vcc, s51, v2")
    a("s_andn2_b32 s3, vcc_lo, s44\ns_cbranch_scc1 L_far")
    a("s_cmp_eq_u64 s[44:45], 0\ns_cbranch_scc0 L_fretry2")
    a("L_fgo:")
    a("s_cmp_eq_u32 s35, 1\ns_cbranch_scc0 L_nof")
    C("S1: make the group's hand-off lines resident in L2")
    a(f"s_lshl3_add_u32 s3, s31, s36\ns_lshl_b32 s3, s3, 11\ns_add_u32 s3, s3, {H1}\nv_lshl_add_u32 v42, v0, 5, s3")
    a(f"s_cmp_eq_u32 s36, 8\ns_cbranch_scc0 L_pw\ns_add_u32 s3, s56, {BST}\nv_add_u32 v42, s3, v40\nL_pw:")
    a("global_load_dword v58, v42, s[28:29] sc1")
    a("L_nof:")
    C("WG 2 announces: the group's global block is cleared, and which memory side its probes found near")
    a("s_cmp_eq_u32 s32, 2\ns_cbranch_scc0 L_c2")
    a("v_lshrrev_b32 v2, 4, v80\nv_sub_u32 v3, 0, v2\nv_and_b32 v4, 1, v0\nv_cmp_ne_u32 vcc, 0, v4\nv_cndmask_b32 v2, v2, v3, vcc")
    row_sum(2, "v_add_u32")
    a("v_readlane_b32 s3, v2, 0\nv_readlane_b32 s44, v2, 16\ns_add_u32 s3, s3, s44")
    a("s_cmp_gt_i32 s3, 0\ns_cselect_b32 s3, 4, 0\ns_xor_b32 s3, s3, s51\ns_and_b32 s3, s3, 4\ns_lshl_b32 s3, s3, 6")
    if guess is not None: a(f"s_movk_i32 s3, {guess << 8}")
    a("s_or_b32 s3, s3, s51\nv_mov_b32 v22, s3")
    a(f"s_lshl_b32 s3, s31, 7\ns_add_u32 s3, s3, {CFL}\nv_lshl_add_u32 v4, v0, 3, s3\ns_mov_b64 exec, 0xffff")
    a("global_store_dwordx2 v4, v[22:23], s[28:29] sc1\ns_mov_b64 exec, -1")
    a("L_c2:")
    STAMP(5)
    C("softmax statistics of the eight waves -> wave factors and the WG's log-sum-exp; ticket for the tail role")
    a("v_and_b32 v44, 7, v0\nv_lshlrev_b32 v44, 7, v44\nv_and_b32 v4, 15, v0\nv_lshlrev_b32 v4, 3, v4")
    lds_wait("st", f"ds_read_b64 v[60:61], v4 offset:{STATW}", 61, False, 2)
    STAMP(6)
    a("s_mov_b32 s38, 1\ns_cmp_eq_u32 s35, 1\ns_cbranch_scc1 L_notick")
    a(f"s_add_u32 s3, s56, {BTK}\ns_atomic_add s38, s[28:29], s3 glc")
    a(f"global_load_dwordx2 v[64:65], v44, s[28:29] offset:{CFL} sc1")
    a("L_notick:")
    a("v_mov_b32 v62, v60"); oct_red(62, "v_max_f32")
    a("v_sub_f32 v60, v60, v62\nv_exp_f32 v60, v60\nv_mul_f32 v61, v61, v60"); oct_red(61, "v_add_f32")
    a("v_rcp_f32 v59, v61\nv_log_f32 v61, v61\nv_mul_f32 v60, v60, v59\nv_add_f32 v62, v61, v62")
    a("s_mov_b64 exec, 0x101\ns_cmp_eq_u32 s34, 0\ns_cbranch_scc1 L_stnear")
    a("global_store_dword v9, v62, s[28:29] sc1\ns_branch L_stdone")
    a("L_stnear:\nglobal_store_dword v9, v62, s[28:29]\nL_stdone:\ns_mov_b64 exec, -1")
    a(f"v_lshrrev_b32 v4, 1, v4\nds_write_b32 v4, v60 offset:{CF}")
    a("v_lshrrev_b32 v4, 5, v0\nv_lshlrev_b32 v4, 5, v4")
    a(f"ds_read_b128 v[48:51], v4 offset:{CF}\nds_read_b128 v[52:55], v4 offset:{CF+16}")
    a("s_waitcnt lgkmcnt(0)")
    C("rank in the group -> s38: < 144 MLP block (pairs share a w1 line column), 144..179 final reducer, else idle")
    a(f"s_add_u32 s38, s38, 1\ns_cmp_lt_u32 s38, 2\ns_cselect_b32 s47, {ntrs}, {ntr}")
    a("s_lshr_b32 s44, s38, 1\ns_lshl_b32 s45, s44, 2\ns_mov_b32 s58, 0x65421003\ns_mov_b32 s59, 7\ns_lshr_b64 s[58:59], s[58:59], s45\ns_and_b32 s45, s58, 7")
    a("s_lshl3_add_u32 s45, s31, s45\ns_add_u32 s3, s31, 64\ns_cmp_eq_u32 s44, 1\ns_cselect_b32 s45, s3, s45")
    a("s_and_b32 s3, s38, 1\ns_lshl1_add_u32 s45, s45, s3\ns_mul_i32 s3, s31, 5\ns_add_u32 s3, s3, s38\ns_add_u32 s3, s3, 126")
    a("s_cmp_lt_u32 s38, 23\ns_cselect_b32 s3, s3, 0xff\ns_cmp_lt_u32 s38, 18\ns_cselect_b32 s38, s45, s3")
    a("s_cmp_eq_u32 s35, 1\ns_cbranch_scc1 L_cgo")
    a("s_cmp_lt_u32 s38, 144\ns_cbranch_scc0 L_notr")
    C("S2: the first w2 row blocks follow the V stream while it drains")
    a("v_and_b32 v4, 28, v40")
    lds_wait("lv", f"ds_read_b32 v3, v4 offset:{LV}", 3, False, 1)
    a(f"s_mul_i32 s45, s38, {32*1152}")
    assert 1 <= ntr <= ntrs <= 4
    for rb in range(ntrs):
        if rb == ntr: a(f"s_cmp_gt_u32 s47, {ntr}\ns_cbranch_scc0 L_trs")
        for lc in range(9):
            a(f"s_mov_b32 m0, {W + 36864 + 4096*lc + 1024*rb}")
            if rb or lc: a(f"s_add_u32 s45, s45, {128 if lc else 8*1152 - 8*128}")
            a("buffer_load_dwordx4 v7, s[52:55], s45 offen nt lds")
    a(f"s_waitcnt vmcnt({9*ntrs})\ns_branch L_trw")
    if ntr < ntrs: a(f"L_trs:\ns_waitcnt vmcnt({9*ntr})\ns_branch L_trw")
    a(f"L_notr:\ns_waitcnt vmcnt(0)\nL_trw:\ns_mov_b32 s46, {SPIN}")
    a("L_cpoll:")
    a("v_cmp_ne_u32 vcc, s63, v65\ns_cbranch_vccz L_cok\ns_sub_u32 s46, s46, 1\ns_cbranch_scc1 L_cok")
    a(f"global_load_dwordx2 v[64:65], v44, s[28:29] offset:{CFL} sc1\ns_waitcnt vmcnt(0)\ns_branch L_cpoll")
    a("L_cok:")
    C("s30 bit x = memory side of group x (majority of the eight votes, flipped for the dies of the other half)")
    a("v_and_b32 v2, 0x100, v64\nv_cmp_ne_u32 vcc, 0, v2\ns_and_b32 s3, vcc_lo, 0xff\ns_bcnt1_i32_b32 s3, s3")
    a("v_and_b32 v2, 4, v64\nv_cmp_ne_u32 vcc, 0, v2\ns_cmp_gt_u32 s3, 4\ns_cselect_b32 s3, 0xff, 0\ns_xor_b32 s30, s3, vcc_lo\ns_and_b32 s30, s30, 0xff")
    s2_setup()
    a("L_cgo:")
    a("s_pack_ll_b32_b16 s3, s47, s30")
    a(f"v_mov_b32 v4, 0\nv_mov_b32 v64, s38\nv_mov_b32 v65, s3\nv_mov_b32 v66, s34\nv_mov_b32 v67, s62\nds_write_b128 v4, v[64:67] offset:{ROLE}")
    a("v_lshlrev_b32 v4, 4, v0\ns_waitcnt lgkmcnt(0)")
    STAMP(7)
    C("combine the eight waves' o, publish it normalised in bf16")
    a("s_barrier")
    for w in range(8): a(f"ds_read_b128 v[{64+4*w}:{67+4*w}], v4 offset:{OP + 1024*w}")
    STAMP(8)
    for w in range(8):
        a(f"s_waitcnt lgkmcnt({0 if stamp else 7-w})")
        c = 48 + (w & ~1); sel = "op_sel:[0,1,0]" if w & 1 else "op_sel_hi:[1,0,1]"
        for k in (0, 2):
            if w == 0: a(f"v_pk_mul_f32 v[{60+k}:{61+k}], v[{64+k}:{65+k}], v[48:49] op_sel_hi:[1,0]")
            else: a(f"v_pk_fma_f32 v[{60+k}:{61+k}], v[{64+4*w+k}:{65+4*w+k}], v[{c}:{c+1}], v[{60+k}:{61+k}] {sel}")
    a("s_cmp_eq_u32 s34, 0")
    a("v_cvt_pk_bf16_f32 v60, v60, v61\nv_cvt_pk_bf16_f32 v61, v62, v63")
    a("s_cbranch_scc0 L_pubfar")
    a("global_store_dwordx2 v8, v[60:61], s[28:29]")
    a("L_pubdone:")
    STAMP(9)
    a("s_cmp_eq_u32 s35, 1\ns_cbranch_scc0 L_dyns")
    C("S1: sum of the eight waves, published on both memory sides")
    a(f"v_lshlrev_b32 v4, 3, v0\nv_add_u32 v6, {SIDE}, v5")
    a("s_barrier")
    for w in range(4): a(f"ds_read2st64_b64 v[{64+4*w}:{67+4*w}], v4 offset0:{(RED + 1024*w)//512} offset1:{(RED + 1024*w + 512)//512}")
    STAMP(10)
    for w in range(4):
        a(f"s_waitcnt lgkmcnt({0 if stamp else 3-w})")
        pkadd(64 + 4*w, 66 + 4*w)
        if w: pkadd(64, 64 + 4*w)
    a("v_cvt_pk_bf16_f32 v64, v64, v65\nglobal_store_dword v5, v64, s[28:29] sc1\nglobal_store_dword v6, v64, s[28:29] sc1")
    STAMP(11)
    a("s_branch L_fin" if stamp else "s_endpgm")
    C("---- slow paths. The near copies do not show up: announce write-through copies, use them once all 16 producers have")
    a(f"L_qslow:\ns_cmp_eq_u32 s46, {NFAIL}\ns_cbranch_scc0 L_qnoann")
    announce()
    a("L_qnoann:")
    a(f"s_lshl_b32 s3, s37, 10\ns_add_u32 s3, s3, {FLF}\nv_and_b32 v26, 15, v0\nv_lshl_add_u32 v26, v26, 6, s3")
    a("global_load_dwordx2 v[64:65], v26, s[28:29] sc1\ns_waitcnt vmcnt(0)")
    a(f"v_cmp_ne_u32 vcc, s63, v65\ns_cbranch_vccnz L_qpoll\nv_or_b32 v44, {FAR}, v44\ns_branch L_qpoll")
    a("L_fretry2:")
    a(f"s_add_u32 s46, s46, 1\ns_cmp_lt_u32 s46, {NFAIL}\ns_cbranch_scc1 L_fagain")
    a(f"s_cmp_eq_u32 s46, {NFAIL}\ns_cbranch_scc0 L_fnoann")
    announce()
    a("L_fnoann:")
    a("global_load_dwordx2 v[66:67], v26, s[28:29] sc1\ns_waitcnt vmcnt(0)")
    a("v_and_b32 v66, 15, v66\nv_cmp_ne_u32 s[44:45], s63, v67\nv_cmp_ne_u32 vcc, s51, v66\ns_andn2_b32 s3, vcc_lo, s44\ns_cbranch_scc1 L_far")
    a(f"s_cmp_lt_u32 s46, {SPIN}\ns_cbranch_scc0 L_fgo")
    a("L_fagain:\nglobal_load_dwordx2 v[80:81], v45, s[28:29] sc1\ns_waitcnt vmcnt(0)\ns_branch L_fpoll")
    C("the group is spread over several dies: the o hand-off uses a separate, write-through block")
    a("L_far:")
    announce()
    a(f"s_mov_b32 s34, {FAR}\nv_add_u32 v19, s34, v19\nv_add_u32 v8, s34, v8")
    a("global_store_dwordx2 v19, v[56:57], s[28:29] sc1\ns_waitcnt vmcnt(0)")
    a("s_mov_b64 exec, 1\nglobal_store_dwordx2 v27, v[22:23], s[28:29] offset:8 sc1\ns_mov_b64 exec, -1")
    a(f"s_mov_b32 s46, {SPIN}")
    a("L_far2:\ns_sleep 8\nglobal_load_dwordx2 v[80:81], v26, s[28:29] offset:8 sc1\ns_waitcnt vmcnt(0)")
    a("v_cmp_ne_u32 vcc, s63, v81\ns_cbranch_vccz L_nof")
    a("s_sub_u32 s46, s46, 1\ns_cbranch_scc0 L_far2\ns_branch L_nof")
    a("L_pubfar:\nglobal_store_dwordx2 v8, v[60:61], s[28:29] sc1\ns_branch L_pubdone")

    C("================ S2: one block of 32 hidden units; wave W owns input columns 64W..64W+63")
    a("L_dyns:\ns_cmp_lt_u32 s38, 144\ns_cbranch_scc1 L_s2b\ns_branch L_s3s")
    a("L_dyn:")
    a(f"v_mov_b32 v4, 0\nds_read_b128 v[8:11], v4 offset:{ROLE}\ns_waitcnt lgkmcnt(0)\nv_readfirstlane_b32 s38, v8\nv_readfirstlane_b32 s47, v9\nv_readfirstlane_b32 s62, v11")
    a("s_lshr_b32 s30, s47, 16\ns_and_b32 s47, s47, 15")
    a("s_cmp_lt_u32 s38, 144\ns_cbranch_scc0 L_s3w")
    s2_setup()
    a("L_s2b:\ns_barrier")
    if stamp: a("s_mov_b32 s35, 2")
    a("global_load_ushort v21, v21, s[18:19]")
    s2_dma(0); s2_dma(1)
    if ntr < ntrs: a(f"s_cmp_gt_u32 s47, {ntr}\ns_cbranch_scc1 L_trd")
    for k in range(4 + ntr, 4 + ntrs): s2_dma(k)
    a("L_trd:")
    for k in range(4 + ntrs, 8): s2_dma(k)
    a("s_barrier")
    s2_dma(2); s2_dma(3)
    C("addresses and constants while the weights land")
    a("v_bfe_u32 v4, v0, 4, 1\nv_and_b32 v5, 15, v0\nv_lshl_add_u32 v5, v5, 1, v4")
    a("s_lshl_b32 s3, s33, 8\nv_and_b32 v6, 24, v5\nv_lshl_add_u32 v7, v6, 3, s3\nv_and_b32 v6, 3, v5\nv_lshl_add_u32 v7, v6, 4, v7")
    a("v_and_b32 v6, 4, v5\nv_lshl_add_u32 v7, v6, 1, v7")
    a("v_lshrrev_b32 v4, 4, v5\nv_mul_u32_u24 v4, 1152, v4\nv_and_b32 v6, 8, v5\nv_lshl_add_u32 v4, v6, 3, v4\nv_and_b32 v6, 7, v5\nv_lshl_add_u32 v4, v6, 2, v4")
    a(f"s_lshl_b32 s3, s33, 7\nv_add_u32 v4, s3, v4\nds_read_b32 v50, v4 offset:{XR}\nds_read_b32 v51, v4 offset:{XR + 32}")
    for k in range(4): a(f"v_and_b32 v{12+k}, 0x3f803f80, v{12+k}")
    a("v_lshrrev_b32 v5, 4, v0\nv_bfe_u32 v4, v0, 3, 1\nv_mul_u32_u24 v20, 80, v4")
    a(f"s_lshl_b32 s3, s33, 8\ns_add_u32 s3, s3, {Y}\nv_lshl_add_u32 v9, v4, 7, s3\nv_lshl_add_u32 v9, v5, 4, v9")
    a(f"v_and_b32 v4, 3, v0\nv_cmp_eq_u32 vcc, 1, v4\nv_mov_b32 v6, {ONES}\nv_cndmask_b32 v9, v9, v6, vcc")
    a("v_lshl_add_u32 v4, v5, 2, v4\nv_bfe_u32 v6, v0, 2, 2\nv_lshl_add_u32 v4, v6, 4, v4")
    a("s_lshl_b32 s3, s33, 3\nv_mul_u32_u24 v10, 80, v4\nv_add_u32 v10, s3, v10\nv_add_u32 v11, s3, v20")
    a("s_mov_b32 s60, 1\ns_movk_i32 s61, 0x100")
    own_side(44)
    a(f"s_lshl_b32 s3, s33, 8\ns_add_u32 s3, s3, s44\ns_add_u32 s3, s3, {H2}")
    vblk(4, 5, 6)
    a("v_and_b32 v26, 15, v0\nv_lshl_add_u32 v24, v26, 4, s3\nv_add_u32 v24, v24, v4\nv_add_u32 v25, 0x8000, v24")
    a("v_and_b32 v4, 16, v0\nv_cmp_ne_u32 s[58:59], 0, v4")
    a("v_lshrrev_b32 v4, 2, v0\nv_lshl_add_u32 v4, v4, 6, s50\nv_and_b32 v36, 3, v0\nv_lshl_add_u32 v4, v36, 3, v4")
    a("v_bfe_u32 v36, v0, 4, 1\nv_lshl_add_u32 v36, v36, 5, v4\nv_xor_b32 v37, 32, v36")
    a(f"s_mov_b32 s46, {SPIN}\nv_mov_b32 v28, 0\nv_mov_b32 v29, 0\nv_mov_b32 v30, 0")
    a("s_sub_u32 s39, s33, 1\ns_cmp_lt_u32 s39, 3\ns_cbranch_scc0 L_s2na")
    C("waves 1..3 finish the block: three 64-column lines of w2 each")
    a(f"s_and_b32 s44, s38, 0xc0\ns_add_u32 s44, s44, s38\ns_lshl_b32 s44, s44, 7\ns_add_u32 s44, s44, {H4}")
    a("s_mul_i32 s3, s39, 12\nv_add_u32 v4, s3, v5")
    for ln in range(3):
        a(f"v_mul_u32_u24 v6, 13, v4\nv_lshrrev_b32 v6, 6, v6\nv_bfe_u32 v6, s30, v6, 1\nv_lshl_add_u32 v6, v6, 13, s44")
        a(f"v_mul_u32_u24 v{28+ln}, {H4S}, v4\nv_add_u32 v{28+ln}, v{28+ln}, v6\nv_lshl_add_u32 v{28+ln}, v26, 3, v{28+ln}")
        if ln < 2: a("v_add_u32 v4, 4, v4")
    a(f"s_mul_i32 s3, s39, {3*4096}\ns_add_u32 s3, s3, {W+36864}"); tr_addr128(32, 38, 3)
    c0 = -2 * LOG2E * 0.7978845608028654
    a(f"v_mov_b32 v148, {f2u(c0)}\nv_mov_b32 v149, {f2u(c0*0.044715)}\nv_mov_b32 v150, {f2u(1 + 1e-5)}\nv_mov_b32 v151, {f2u(1e-10)}")
    a(f"v_mov_b32 v38, {f2u(1/576)}\nv_mov_b32 v39, v38\nv_mov_b32 v152, 0xfffff000\nv_mul_u32_u24 v8, 80, v0")
    word_tags()
    a("L_s2na:")
    a("s_waitcnt vmcnt(2) lgkmcnt(0)")
    a("v_lshlrev_b32 v21, 16, v21\nv_lshlrev_b32 v48, 16, v50\nv_lshlrev_b32 v49, 16, v51\nv_and_b32 v50, 0xffff0000, v50\nv_and_b32 v51, 0xffff0000, v51")
    a("s_cmp_lt_u32 s39, 3\ns_barrier\ns_cbranch_scc0 L_s2nw2")
    for ln in range(3):
        for ct in range(4):
            for eh in range(2):
                r = 80 + 16*ln + 4*ct + 2*eh
                a(f"ds_read_b64_tr_b16 v[{r}:{r+1}], v{32+ct} offset:{4096*ln + 2048*eh}")
    a("L_s2nw2:")
    a("s_waitcnt vmcnt(1)")
    for k in range(2): a(f"global_load_dwordx4 v[{40+4*k}:{43+4*k}], v{24+k}, s[28:29] sc1")
    a("s_waitcnt vmcnt(2)")
    STAMP(10)
    for ct in range(2):
        for vl in range(4):
            r = 64 + ct*8 + 2*vl
            a(f"ds_read_b64_tr_b16 v[{r}:{r+1}], v{36+ct} offset:{1024*vl}")
    C("h = x + sum of the eight groups' wo partials (a missing partial shows up as NaN)")
    a("L_s2poll:")
    a("s_waitcnt vmcnt(1)"); mfma(56, 12, 40, 48)
    a("s_waitcnt vmcnt(0)"); mfma(56, 12, 44, 56)
    a("v_cmp_u_f32 vcc, v56, v56")
    a("v_cvt_pk_bf16_f32 v56, v56, v57\nv_cvt_pk_bf16_f32 v57, v58, v59")
    a("s_cbranch_vccnz L_s2chk")
    a("L_s2go:")
    STAMP(11)
    C("h.w1, column sums of w1, sum(h) and sum(h^2) over this wave's 64 columns")
    a(f"ds_write_b64 v7, v[56:57] offset:{Y}")
    a("ds_read_b128 v[128:131], v9\nds_read_b128 v[132:135], v9 offset:64\ns_waitcnt lgkmcnt(0)")
    for ct in range(3):
        for u in range(2): mfma(136 + 4*ct, 128 + 4*u, 64 + ct*8 + 4*u if ct < 2 else 128 + 4*u, 136 + 4*ct if u else None)
    a("s_cmp_lt_u32 s39, 3")
    a("v_cndmask_b32 v136, v136, v140, s[58:59]\nv_cndmask_b32 v137, v137, v141, s[58:59]")
    a(f"ds_write_b64 v10, v[136:137] offset:{T}\ns_mov_b64 exec, s[60:61]\nds_write_b64 v11, v[144:145] offset:{SS}\ns_mov_b64 exec, -1")
    a("s_waitcnt lgkmcnt(0)\ns_barrier\ns_cbranch_scc0 L_fin")
    C("LN(LN(h)) = (h - m) / sqrt(v + eps*(v + eps)) applied after the product; bias; GELU (tanh form as x*sigmoid)")
    for k in range(4): a(f"ds_read_b128 v[{60+4*k}:{63+4*k}], v20 offset:{SS + 16*k}")
    a(f"ds_read_b64 v[76:77], v20 offset:{SS + 64}")
    for k in range(4): a(f"ds_read_b128 v[{128+4*k}:{131+4*k}], v8 offset:{T + 16*k}")
    a(f"ds_read_b64 v[144:145], v8 offset:{T + 64}")
    for k in range(4):
        a(f"s_waitcnt lgkmcnt({9-k})"); pkadd(60 + 4*k, 62 + 4*k)
        if k == 1: pkadd(60, 64)
    a("s_waitcnt lgkmcnt(5)")
    pkadd(68, 72); pkadd(60, 76); pkadd(60, 68)
    a("v_pk_mul_f32 v[60:61], v[60:61], v[38:39]\nv_fma_f32 v60, -v61, v61, v60\nv_max_f32 v60, 0, v60")
    a("v_fma_f32 v62, v60, v150, v151\nv_rsq_f32 v62, v62")
    a("s_waitcnt lgkmcnt(0)")
    for k in range(4): pkadd(128 + 4*k, 130 + 4*k)
    pkadd(128, 132); pkadd(136, 140); pkadd(128, 144); pkadd(128, 136)
    a("v_fma_f32 v128, -v61, v129, v128\nv_fma_f32 v128, v62, v128, v21")
    a("v_mul_f32 v129, v128, v128\nv_fma_f32 v129, v129, v149, v148\nv_mul_f32 v129, v128, v129")
    a("v_exp_f32 v129, v129\nv_add_f32 v129, 1.0, v129\nv_rcp_f32 v129, v129\nv_mul_f32 v128, v128, v129")
    a(f"v_mov_b32_dpp v129, v128 row_shl:1 {DPPF}\nv_cvt_pk_bf16_f32 v128, v128, v129")
    for r in (1, 2, 3): a(f"v_mov_b32_dpp v{128+r}, v128 row_shl:{2*r} {DPPF}")
    C("times w2, partial outputs with 12 tag bits per word to the reducers")
    for t in range(12): mfma(80 + 4*t, 128, 80 + 4*t, None)
    for ln in range(3):
        b = 80 + 16*ln
        a(f"v_permlane16_swap_b32 v{b+8}, v{b+12}\nv_permlane16_swap_b32 v{b}, v{b+4}\nv_and_or_b32 v{b+1}, v{b+8}, v152, s63\nv_and_or_b32 v{b}, v{b}, v152, s62")
        a(f"global_store_dwordx2 v{28 + ln}, v[{b}:{b+1}], s[28:29] sc1")
    STAMP(12)
    a("s_branch L_fin" if stamp else "s_endpgm")
    a("L_s2chk:")
    for k in range(2):
        r = 40 + 4*k
        a(f"v_max3_u32 v31, v{r}, v{r+1}, v{r+2}\nv_max_u32 v31, v31, v{r+3}\nv_cmp_eq_u32 s[{94+2*k}:{95+2*k}], -1, v31")
    a("s_or_b64 s[44:45], s[94:95], s[96:97]\ns_cbranch_scc0 L_s2go")
    a("s_sub_u32 s46, s46, 1\ns_cbranch_scc1 L_s2go")
    for k in range(2):
        a(f"s_mov_b64 exec, s[{94+2*k}:{95+2*k}]\ns_cbranch_execz L_s2r{k}")
        a(f"global_load_dwordx4 v[{40+4*k}:{43+4*k}], v{24+k}, s[28:29] sc1\nL_s2r{k}:")
    a("s_mov_b64 exec, -1\ns_waitcnt vmcnt(0)\ns_branch L_s2poll")

    C("================ S3: final reduction of 32 output columns of one batch row")
    def red8(b):
        a(f"v_permlane32_swap_b32 v{b}, v{b+2}\nv_permlane32_swap_b32 v{b+1}, v{b+3}")
        pkadd(b, b + 2)
        a(f"v_permlane16_swap_b32 v{b}, v{b+1}\nv_add_f32 v{b}, v{b}, v{b+1}\nv_add_f32_dpp v{b}, v{b}, v{b} row_ror:8 {DPPF}")
    def rid():
        if stamp: a("s_mov_b32 s35, 0")
        a("s_sub_u32 s38, s38, 144\ns_cmp_ge_u32 s38, 36\ns_cbranch_scc1 L_fin")
        if stamp: a("s_mov_b32 s35, 3")
    a("L_s3s:")
    rid()
    a("s_lshr_b32 s3, s38, 2\ns_lshl_b32 s3, s3, 6\ns_and_b32 s44, s38, 1\ns_lshl_b32 s44, s44, 5\ns_add_u32 s3, s3, s44")
    a("v_and_b32 v4, 7, v0\nv_lshl_add_u32 v6, v4, 1, s3\nv_and_b32 v5, 16, v0\nv_add_u32 v6, v5, v6\nv_lshrrev_b32 v5, 5, v0\nv_add_u32 v6, v6, v5")
    a("v_lshlrev_b32 v6, 1, v6\ns_bfe_u32 s3, s38, 0x10001\ns_mul_i32 s3, s3, 1152\nv_add_u32 v7, s3, v6")
    a("global_load_ushort v20, v7, s[4:5]\nglobal_load_ushort v21, v6, s[22:23]")
    own_side(45)
    a(f"s_lshl_b32 s3, s38, 6\ns_add_u32 s3, s3, s45\ns_add_u32 s3, s3, {H2}\nv_lshrrev_b32 v5, 3, v0")
    vblk(5, 5, 8)
    a(f"v_lshl_add_u32 v5, v4, 3, v5\nv_add_u32 v5, s3, v5\ns_mov_b32 s46, {SPIN}")
    a("L_s3hpoll:")
    a("global_load_dwordx2 v[28:29], v5, s[28:29] sc1\ns_waitcnt vmcnt(0)")
    a("v_max_u32 v8, v28, v29\nv_cmp_eq_u32 vcc, -1, v8\ns_cbranch_vccz L_s3hgo")
    a(f"s_sleep {hsleep}\ns_sub_u32 s46, s46, 1\ns_cbranch_scc0 L_s3hpoll")
    a("L_s3hgo:")
    STAMP(10)
    a("v_lshlrev_b32 v24, 16, v28\nv_and_b32 v25, 0xffff0000, v28\nv_lshlrev_b32 v26, 16, v29\nv_and_b32 v27, 0xffff0000, v29")
    red8(24)
    a("v_lshlrev_b32 v20, 16, v20\nv_lshlrev_b32 v21, 16, v21\nv_add_f32 v20, v20, v24"); round1(20)
    a("v_add_f32 v20, v20, v21")
    C("every WG has read the epoch word by now: reducer 0 advances it")
    a("s_cmp_eq_u32 s38, 0\ns_cbranch_scc0 L_s3c")
    a(f"v_mov_b32 v41, s62\nv_mov_b32 v42, {EP}\ns_mov_b64 exec, 1")
    a("global_store_dword v42, v41, s[28:29] sc1\ns_mov_b64 exec, -1\ns_branch L_s3c")
    a("L_s3w:")
    rid()
    a("v_mov_b32 v7, 0")
    a("L_s3c:")
    word_tags(); own_side(45)
    a(f"s_mul_i32 s3, s38, {H4S}\ns_and_b32 s44, s33, 12\ns_add_u32 s44, s44, s33\ns_lshl_b32 s44, s44, 11\ns_add_u32 s3, s3, s44\ns_add_u32 s3, s3, s45\ns_add_u32 s3, s3, {H4}")
    a("v_lshl_add_u32 v1, v0, 4, s3\nv_mov_b32 v10, 0xfff")
    a(f"v_lshlrev_b32 v2, 2, v0\ns_lshl_b32 s3, s33, 8\nv_add_u32 v3, s3, v2\ns_mov_b32 s46, {SPIN}")
    a("s_barrier")
    C("16 sources per wave; EXEC keeps the lanes whose words are still missing")
    a("L_h4p:")
    a("global_load_dwordx4 v[48:51], v1, s[28:29] sc1\nglobal_load_dwordx4 v[52:55], v1, s[28:29] offset:1024 sc1\ns_waitcnt vmcnt(0)")
    for j in range(8): a(f"v_xor_b32 v{32+j}, s{62 + (j & 1)}, v{48 + j}")
    a("v_or3_b32 v8, v32, v33, v34\nv_or3_b32 v9, v35, v36, v37\nv_or3_b32 v8, v38, v39, v8\nv_or_b32 v8, v8, v9\nv_and_b32 v8, v8, v10")
    a("v_cmp_ne_u32 vcc, 0, v8\ns_cbranch_vccnz L_h4r")
    a("L_h4t:\ns_mov_b64 exec, -1")
    pkadd(32, 36); pkadd(34, 38)
    red8(32)
    a(f"ds_write_b32 v3, v32 offset:{FIN}")
    a("s_cmp_eq_u32 s33, 0\ns_waitcnt lgkmcnt(0)\ns_barrier\ns_cbranch_scc0 L_fin")
    for k in range(4): a(f"ds_read2st64_b32 v[{40+2*k}:{41+2*k}], v2 offset0:{FIN//256 + 2*k} offset1:{FIN//256 + 2*k + 1}")
    a(f"ds_read_b32 v30, v2 offset:{FIN + 2048}")
    STAMP(11)
    a("s_mov_b32 exec_lo, 0x00ff00ff\ns_mov_b32 exec_hi, 0x00ff00ff\ns_waitcnt lgkmcnt(0)")
    pkadd(40, 42); pkadd(44, 46); a("v_add_f32 v30, v30, v20"); pkadd(40, 44)
    a("v_add_f32 v40, v40, v41\nv_add_f32 v40, v40, v30\nv_cvt_pk_bf16_f32 v40, v40, v40")
    a("global_store_short v7, v40, s[24:25]")
    a("L_fin:")
    if stamp:
        if isinstance(swave, str): a(f"s_cmp_eq_u32 s35, 2\ns_cselect_b32 s3, {swave[4:] or 1}, 0\ns_cmp_eq_u32 s33, s3\ns_cbranch_scc0 L_exit2")
        else: a(f"s_cmp_eq_u32 s33, {swave}\ns_cbranch_scc0 L_exit2")
        a("s_memrealtime s[90:91]\ns_waitcnt vmcnt(0)\ns_memrealtime s[92:93]")
        a("s_mov_b64 exec, 1\ns_waitcnt lgkmcnt(0)")
        a(f"s_lshl_b32 s3, s2, 7\ns_add_u32 s3, s3, {STAMP_OFF}\nv_mov_b32 v1, s3")
        a("v_mov_b32 v2, s35\nv_mov_b32 v3, s38\nglobal_store_dwordx2 v1, v[2:3], s[28:29] offset:120")
        for i in range(15): a(f"v_mov_b32 v2, s{64+2*i}\nv_mov_b32 v3, s{65+2*i}\nglobal_store_dwordx2 v1, v[2:3], s[28:29] offset:{8*i}")
        for key, lo in ((f"s_load_dword s62, s[28:29], {EP}", 1), ("s_add_u32 s8, s8, s3", 2)):
            i = L.index(key)
            L[i:i] = [f"s_mov_b64 s[{64+2*k}:{65+2*k}], 0" for k in range(lo, 15)]
    a("L_exit2:\ns_endpgm")
    a("L_h4r:\ns_mov_b64 exec, vcc\ns_sub_u32 s46, s46, 1\ns_cbranch_scc0 L_h4p\ns_branch L_h4t")
    body = hazard.run(L)
    body = [l if l.endswith(":") or l.startswith((";", ".")) else "    " + l for l in body]
    tab = [(n << 8) | (role << 16) | (ridx << 24) for p in table for (role, ridx, n) in p]
    return HEAD + f""".amdgcn_target "amdgcn-amd-amdhsa--gfx950"
.text
.globl {NAME}_kernel
.type L_front,@object
L_front:
.fill 768, 4, 0
.p2align 8
.type {NAME}_kernel,@function
{NAME}_kernel:
""" + "\n".join(body) + """
; per WG of a group: steps << 8 | S1 << 16 | wo column line << 24
.p2align 7
.type L_table,@object
L_table:
""" + "\n".join(f".long {t:#x}" for t in tab) + f"""
.p2align 8
L_codeend:
.section .rodata,"a"
.p2align 6
.amdhsa_kernel {NAME}_kernel
  .amdhsa_next_free_vgpr 168
  .amdhsa_next_free_sgpr 102
  .amdhsa_accum_offset 168
  .amdhsa_group_segment_fixed_size 0
  .amdhsa_kernarg_size 104
  .amdhsa_user_sgpr_count 2
  .amdhsa_user_sgpr_kernarg_segment_ptr 1
  .amdhsa_system_sgpr_workgroup_id_x 1
  .amdhsa_float_denorm_mode_32 3
.end_amdhsa_kernel
"""
def gen(**kw):
    import subprocess, re
    lines = 100
    for _ in range(3):
        txt = gen1(lines, **kw)
        open("_g.s", "w").write(txt)
        subprocess.run(["clang", "-x", "assembler", "-target", "amdgcn-amd-amdhsa", "-mcpu=gfx950", "-c", "_g.s", "-o", "_g.o"], check=True)
        sym = subprocess.run(["llvm-objdump", "-t", "_g.o"], capture_output=True, text=True).stdout
        at = lambda n: int(re.search(r"^([0-9a-f]+) .*" + n + "$", sym, re.M).group(1), 16)
        end = at("L_codeend") - at("_kernel")
        assert at("L_end256") - at("_kernel") <= 256 and end // 256 <= 64
        if end // 128 == lines: return txt
        lines = end // 128
    raise RuntimeError("size did not converge")
if __name__ == "__main__":
    open("k.s", "w").write(gen())
```

```python
import sys, struct
import hazard
NAME = "sequential_preLN__sliding_block_cached__mixer_channel_mlp__decode"
def f2u(x): return struct.unpack("<I", struct.pack("<f", x))[0]

EP, FL, H2, H1, H4, QP = 0x0, 0x1000, 0x4000, 0x10000, 0x30000, 0xe0000
GF, CFL, FLF, FAR = 0x2000, 0x2400, 0xc000, 0x100000
NFAIL = 4
H2S = 3072
ST = H2 + 2304
TK = H2 + 2560
TAGMUL, TAGADD = 0x9E3779B1, 0x7F4A7C15
STAMP_OFF = 512 << 20
ROLE, LV, QM, XR = 3600, 2976, 3008, 20480
XN, Q, STATW, CNT, CF, ONES, SS, DUMP, Y, T, FIN, OP, RED, WQ, W = (
    0, 2304, 2816, 2944, 3072, 3200, 3328, 3584, 3840, 6144, 6144, 12288, 20480, 24576, 45056)
LDS_SIZE = W + 73728
NMAX = 18
WOF = 96
KR, VR = 24, 96
LOG2E = 1.4426950408889634
SPIN = 1 << 15

def mk_table(a=(13, 13), b=(17,)*6, last=(13, 14, 14, 17, 17, 17, 18, 18)):
    t = []; k = 0
    for q in range(3):
        row = [(1, 2*q, a[0]), (1, 2*q+1, a[1])]
        for n in b: row.append((0, k & 1, n)); k += 1
        t.append(row)
    row = [(1, 6+i, last[i]) for i in range(3)]
    for n in last[3:]: row.append((0, k & 1, n)); k += 1
    t.append(row)
    return t
DEFAULT_TABLE = mk_table(last=(13, 13, 13, 18, 18, 18, 18, 17))

def gen1(code_lines, D=5, J=9, EARLY2=0, stamp=False, table=DEFAULT_TABLE, local=True, swave=0, fine=False, noround=False, stagger=True, fine2=False, s2sleep=0, s1sleep=0, w1a='', kvf='nt', masked=True, tick_lv=False, lvpos=0, p3=1, p3s=0, p2=0, p2s=0, p1=0, ntr=(0, 0, 0), ntrs=4, lvall=True, pollearly=False, latebe=False, trth=40, wb=0, wbs=16, outf='', s3d=0, gate=None, hsleep=6, egate=8, dpat=(0,), xpat=(1,), NSKIP=5, pw2=False, ra=3, rb=5, wx=0, h4pf=2, h4f='', qmark=0, b5early=True, gf=1, loct=3, p3f=True, tlb=0, tight=False):
    L = []
    def a(s):
        for x in s.split("\n"):
            x = x.strip()
            if x: L.append(x)
    def STAMP(i):
        if stamp: a(f"s_memrealtime s[{64+2*i}:{65+2*i}]")
    DPPF = "row_mask:0xf bank_mask:0xf"
    def row_sum(r, op="v_add_f32"):
        for k in (8, 4, 2, 1): a(f"{op}_dpp v{r}, v{r}, v{r} row_ror:{k} {DPPF}")
    def oct_red(r, op):
        a(f"{op}_dpp v{r}, v{r}, v{r} quad_perm:[1,0,3,2] {DPPF}")
        a(f"{op}_dpp v{r}, v{r}, v{r} quad_perm:[2,3,0,1] {DPPF}")
        a(f"{op}_dpp v{r}, v{r}, v{r} row_half_mirror {DPPF}")
    def round2(x, y, tmp):
        a(f"v_cvt_pk_bf16_f32 v{tmp}, v{x}, v{y}")
        a(f"v_lshlrev_b32 v{x}, 16, v{tmp}")
        a(f"v_and_b32 v{y}, 0xffff0000, v{tmp}")
    def round1(x):
        a(f"v_cvt_pk_bf16_f32 v{x}, v{x}, v{x}")
        a(f"v_lshlrev_b32 v{x}, 16, v{x}")
    def pkadd(x, y, d=None):
        d = x if d is None else d
        a(f"v_pk_add_f32 v[{d}:{d+1}], v[{x}:{x+1}], v[{y}:{y+1}]")
    def srd(base, nbytes, dst=40):
        a(f"s_mov_b32 s{dst}, s{base}\ns_mov_b32 s{dst+1}, s{base+1}\ns_mov_b32 s{dst+2}, {nbytes}\ns_mov_b32 s{dst+3}, 0x20000")
    def sel_masks(lane, dst, tmp):
        a(f"v_and_b32 v{tmp}, 1, v{lane}")
        a(f"v_lshlrev_b32 v{tmp}, 4, v{tmp}")
        a(f"s_mov_b32 s47, 0xffff\nv_lshlrev_b32 v{tmp}, v{tmp}, s47")
        a(f"v_bfe_u32 v{tmp+1}, v{lane}, 1, 2")
        for k in range(4):
            a(f"v_cmp_eq_u32 vcc, {k}, v{tmp+1}")
            a(f"v_cndmask_b32 v{dst+k}, 0, v{tmp}, vcc")
    def tr_addr128(lane, dst, tmp, base_s, perm=(0, 2, 1, 3)):
        a(f"v_lshrrev_b32 v{tmp}, 2, v{lane}")
        a(f"v_bfe_u32 v{tmp+1}, v{lane}, 3, 2")
        a(f"v_lshl_add_u32 v{tmp}, v{tmp}, 7, s{base_s}")
        a(f"v_lshl_add_u32 v{tmp}, v{tmp+1}, 5, v{tmp}")
        a(f"v_and_b32 v{tmp+1}, 3, v{lane}")
        a(f"v_lshl_add_u32 v{dst}, v{tmp+1}, 3, v{tmp}")
        for ct in (1, 2, 3): a(f"v_xor_b32 v{dst+ct}, {perm[ct]*32}, v{dst}")
    def dma_chunk128(lane, dst, tmp):
        a(f"v_lshrrev_b32 v{tmp}, 3, v{lane}")
        a(f"v_and_b32 v{dst}, 6, v{tmp}")
        a(f"v_xor_b32 v{dst}, v{dst}, v{lane}")
        a(f"v_and_b32 v{dst}, 7, v{dst}")
        a(f"v_lshlrev_b32 v{dst}, 4, v{dst}")
    def w1_voff(lane, dst, tmp):
        a(f"v_lshrrev_b32 v{dst}, 3, v{lane}")
        a(f"v_and_b32 v{tmp+1}, 2, v{dst}")
        a(f"v_bfe_u32 v{tmp}, v{lane}, 2, 1")
        a(f"v_lshl_add_u32 v{dst}, v{tmp}, 4, v{dst}")
        a(f"v_mul_u32_u24 v{dst}, 9216, v{dst}")
        a(f"v_xor_b32 v{tmp}, v{tmp+1}, v{lane}")
        a(f"v_and_b32 v{tmp}, 3, v{tmp}")
        a(f"v_lshl_add_u32 v{dst}, v{tmp}, 4, v{dst}")
    def w2_voff(lane, dst, tmp):
        dma_chunk128(lane, dst, tmp)
        a(f"v_mul_u32_u24 v{tmp}, 1152, v{tmp}")
        a(f"v_add_u32 v{dst}, v{dst}, v{tmp}")
    def s2_dma(k, v1off, v2off):
        if k < 4:
            if k == 2: a(f"s_xor_b32 s51, s51, 2048\ns_add_u32 s48, s48, s56")
            a(f"s_add_u32 m0, s51, {(k & 1)*1024}\ns_add_u32 s45, s48, {(k & 1)*8*9216}")
            a(f"buffer_load_dwordx4 v{v1off}, s[40:43], s45 offen {w1a if k < 2 else 'nt'} lds")
        else:
            a(f"s_add_u32 m0, s50, {36864 + (k-4)*1024}")
            a(f"s_add_u32 s45, s49, {(k-4)*8*1152}")
            a(f"buffer_load_dwordx4 v{v2off}, s[52:55], s45 offen nt lds")
    def s2_setup():
        a(f"s_mul_i32 s48, s33, {64*9216}\ns_lshl_b32 s45, s38, 6\ns_add_u32 s48, s48, s45\ns_add_u32 s18, s18, s45\ns_addc_u32 s19, s19, 0")
        a(f"s_mul_i32 s49, s38, {32*1152}\ns_lshl_b32 s45, s33, 7\ns_add_u32 s49, s49, s45")
        a(f"s_bitcmp1_b32 s38, 0\ns_cselect_b32 s44, {32*9216}, 0\ns_cselect_b32 s51, 2048, 0\ns_add_u32 s48, s48, s44\ns_add_u32 s51, s51, s50")
        a(f"s_lshl_b32 s44, s44, 1\ns_sub_u32 s56, {32*9216}, s44")
    def s2_pre(t0):
        srd(16, 576*4608*2, 40); srd(20, 4608*576*2, 52)
        a(f"s_lshl_b32 s50, s33, 12\ns_add_u32 s50, s50, {W}")
        w1_voff(0, 6, t0); w2_voff(0, 7, t0)
        a(f"v_bfe_u32 v{t0}, v0, 2, 1\nv_and_b32 v21, 3, v0\nv_lshl_add_u32 v21, v{t0}, 4, v21\nv_lshrrev_b32 v{t0}, 4, v0\nv_lshl_add_u32 v21, v{t0}, 2, v21\nv_lshlrev_b32 v21, 1, v21")

    def ppoll(name, regs, loads, depth, slp, tmp, init=True, tagged=None):
        if init:
            for r in regs:
                for k in range(4): a(f"v_mov_b32 v{r+k}, -1")
            for k in range(len(regs)): a(f"s_mov_b64 s[{94+2*k}:{95+2*k}], -1")
        a(f"L_{name}p:")
        for k, r in enumerate(regs):
            a(f"s_mov_b64 exec, s[{94+2*k}:{95+2*k}]\ns_cbranch_execz L_{name}n{k}")
            a(loads[k])
            a(f"L_{name}n{k}:")
        a("s_mov_b64 exec, -1")
        if slp: a(f"s_sleep {slp}")
        a(f"s_waitcnt vmcnt({len(regs)*(depth-1)})")
        a(f"s_sub_u32 s46, s46, 1\ns_cbranch_scc1 L_{name}t")
        a(f"L_{name}c:")
        if tagged:
            for k, r in enumerate(regs):
                y = tagged + 4*k
                for j in range(4): a(f"v_xor_b32 v{y+j}, s{62 + (j & 1)}, v{r+j}")
                a(f"v_or3_b32 v{tmp+k}, v{y}, v{y+1}, v{y+2}\nv_or_b32 v{tmp+k}, v{tmp+k}, v{y+3}\nv_lshlrev_b32 v{tmp+k}, 20, v{tmp+k}")
                a(f"v_cmp_ne_u32 s[{94+2*k}:{95+2*k}], 0, v{tmp+k}")
        else:
            for k, r in enumerate(regs):
                a(f"v_max3_u32 v{tmp+k}, v{r}, v{r+1}, v{r+2}")
            for k, r in enumerate(regs):
                a(f"v_max_u32 v{tmp+k}, v{tmp+k}, v{r+3}")
            for k, r in enumerate(regs):
                a(f"v_cmp_eq_u32 s[{94+2*k}:{95+2*k}], -1, v{tmp+k}")
        a("s_or_b64 s[44:45], s[94:95], s[96:97]")
        for k in range(2, len(regs)): a(f"s_or_b64 s[44:45], s[44:45], s[{94+2*k}:{95+2*k}]")
        a(f"s_cbranch_scc1 L_{name}p")
        a(f"L_{name}t:")

    ends = []
    for p in table:
        e = 0; w = 0
        for i, (_, _, n) in enumerate(p):
            e += n; w |= e << (8 * i)
        ends.append(w)
    assert ends[0] == ends[1] == ends[2]
    a("s_load_dwordx16 s[4:19], s[0:1], 0")
    STAMP(0)
    a("v_readfirstlane_b32 s33, v0")
    a("s_cmpk_ge_u32 s2, 0x100\ns_cbranch_scc1 L_exit")
    a("s_getpc_b64 s[48:49]\nL_pc:")
    a("s_lshr_b32 s32, s2, 3")
    a("s_cmp_eq_u32 s33, 0\ns_cbranch_scc1 L_svc0")
    a(f"s_and_b32 s3, s32, 1\ns_mulk_i32 s3, {code_lines*64}\ns_addk_i32 s3, -8192")
    a(f"v_min_u32 v1, {64 + code_lines//2-1}, v0\nv_lshl_add_u32 v1, v1, 7, s3")
    a("global_load_dword v7, v1, s[48:49]")
    a("v_and_b32 v0, 63, v0")
    dma_chunk128(0, 3, 4)
    a("v_lshl_add_u32 v3, v4, 13, v3")
    a(f"s_lshl4_add_u32 m0, s33, {WQ - 1024}")
    a("s_and_b32 s31, s2, 7\ns_lshr_b32 s37, s32, 4\ns_lshl1_add_u32 s37, s31, s37")
    a("s_bfe_u32 s44, s32, 0x20002\ns_mulk_i32 s44, 1152\ns_add_u32 s44, s44, s33\ns_addk_i32 s44, -64")
    a("s_and_b32 s45, s32, 3\ns_lshl2_add_u32 s45, s37, s45\ns_lshl3_add_u32 s44, s44, s45\ns_lshl_b32 s44, s44, 7")
    a("v_add_u32 v3, s44, v3\ns_mov_b32 s44, 0x80000\nv_add_u32 v4, s44, v3\nv_add_u32 v5, s44, v4")
    a("s_waitcnt lgkmcnt(0)")
    STAMP(1)
    a("global_load_lds_dwordx4 v3, s[10:11] nt")
    a("s_addk_i32 m0, 0x2000\ns_cmpk_lt_u32 s33, 192")
    a("global_load_lds_dwordx4 v4, s[10:11] nt")
    a("s_cbranch_scc0 L_wq2")
    a("s_addk_i32 m0, 0x2000")
    a("global_load_lds_dwordx4 v5, s[10:11] nt")
    a("s_branch L_wq2")
    a("L_end256:")
    a(".p2align 8")
    a("L_svc0:")
    a("s_setprio 3")
    a("v_mul_u32_u24 v2, 36, v0")
    a("s_waitcnt lgkmcnt(0)")
    a("global_load_dwordx4 v[10:13], v2, s[4:5]\nglobal_load_dwordx4 v[14:17], v2, s[4:5] offset:16\nglobal_load_dword v18, v2, s[4:5] offset:32")
    if tlb:
        a("s_and_b32 s31, s2, 7\ns_lshr_b32 s37, s32, 4\ns_lshl1_add_u32 s37, s31, s37")
        a("s_and_b32 s3, s32, 8\ns_lshl1_add_u32 s3, s3, s37\ns_lshl3_add_u32 s3, s3, 7\ns_lshl_b32 s3, s3, 20\nv_mov_b32 v19, s3")
        a("global_load_dword v19, v19, s[8:9] nt")
    if tlb > 1:
        a("v_min_u32 v41, 2, v0\nv_lshlrev_b32 v41, 21, v41")
        a("global_load_dword v38, v41, s[12:13] nt\nglobal_load_dword v39, v41, s[16:17] nt")
    a("v_lshlrev_b32 v40, 2, v0\nv_mov_b32 v56, -1\nv_mov_b32 v57, -1\nv_mov_b32 v3, 0\nv_mov_b32 v4, 0x3f803f80")
    a(f"ds_write2st64_b32 v40, v56, v57 offset0:{Q//256} offset1:{Q//256+1}")
    a(f"ds_write2st64_b32 v40, v3, v4 offset0:{STATW//256} offset1:{CF//256}")
    a("s_waitcnt lgkmcnt(0)")
    a("s_load_dwordx8 s[20:27], s[0:1], 64\ns_load_dwordx2 s[28:29], s[0:1], 96")
    a("s_barrier")
    a("s_branch L_service")

    a("L_wq2:")
    a(f"s_mov_b32 s44, {ends[0] & 0xffffffff:#x}\ns_mov_b32 s45, {ends[0] >> 32:#x}\ns_cmp_ge_u32 s32, 24")
    a(f"s_cselect_b32 s44, {ends[3] & 0xffffffff:#x}, s44\ns_cselect_b32 s45, {ends[3] >> 32:#x}, s45")
    a("s_lshl_b32 s46, s32, 3\ns_lshr_b64 s[44:45], s[44:45], s46")
    if ra: a(f"s_mul_i32 s45, s31, {ra}\ns_add_u32 s44, s44, s45")
    if rb: a(f"s_lshr_b32 s45, s32, 3\ns_mul_i32 s45, s45, {rb}\ns_add_u32 s44, s44, s45")
    a(f"s_add_u32 s44, s44, {128 + NSKIP - NMAX}\ns_and_b32 s44, s44, 127\ns_lshl_b32 s44, s44, 13")
    a("s_lshl4_add_u32 s46, s33, -1024")
    if wx: a(f"s_and_b32 s45, s32, {wx}\ns_lshl_b32 s45, s45, 10\ns_xor_b32 s46, s46, s45")
    a("s_add_u32 s46, s46, s44")
    a("v_bfe_u32 v5, v0, 2, 2\nv_lshrrev_b32 v4, 4, v0\nv_and_b32 v1, 3, v0")
    a("v_lshl_add_u32 v1, v1, 4, s46\nv_lshl_add_u32 v1, v4, 6, v1\nv_lshl_add_u32 v1, v5, 8, v1")
    a("s_and_b32 s3, s32, 8\ns_lshl1_add_u32 s3, s3, s37\ns_lshl3_add_u32 s3, s3, 7\ns_lshl_b32 s3, s3, 20")
    a("s_add_u32 s6, s6, s3\ns_addc_u32 s7, s7, 0\ns_mov_b32 s57, 0xfffff")
    if not latebe: a("s_barrier")
    issued = [1]
    def throttle():
        if issued[0] >= D:
            a(f"s_waitcnt vmcnt({D-1-dpat[issued[0] % len(dpat)]})")
            if xpat and issued[0] > D and xpat[issued[0] % len(xpat)]:
                a(f"s_cmp_eq_u32 s63, 0\ns_cbranch_scc0 L_x{issued[0]}\ns_waitcnt vmcnt({D-1-xpat[issued[0] % len(xpat)]})\nL_x{issued[0]}:")
        issued[0] += 1
    def load_unit(kind, t):
        base, areg, sb = (KR, 1, "s[6:7]") if kind == "K" else (VR, 2, "s[8:9]")
        if t < NSKIP: a(f"s_cmp_ge_u32 s34, {NMAX-t}\ns_cbranch_scc0 L_skip{kind}{t}")
        throttle()
        a(f"global_load_dwordx4 v[{base+4*t}:{base+4*t+3}], v{areg}, {sb} {kvf}")
        if t < NSKIP: a(f"L_skip{kind}{t}:")
        if kind == "K" and t == NMAX - 1: a(f"v_subrev_u32 v1, {(NMAX-1)*8192}, v1\nv_and_b32 v1, s57, v1")
        elif t != (NMAX - 1 if kind == "V" else NSKIP - 1): a(f"v_add_u32 v{areg}, 0x2000, v{areg}\nv_and_b32 v{areg}, s57, v{areg}")
    for t in list(range(NSKIP, NMAX)) + list(range(NSKIP)):
        load_unit("K", t)
        if t == NSKIP + D - 2:
            if latebe: a("s_barrier")
            a("s_lshl2_add_u32 s47, s32, L_table-L_pc")
            a("s_load_dword s30, s[48:49], s47\ns_load_dwordx8 s[20:27], s[0:1], 64\ns_load_dwordx2 s[28:29], s[0:1], 96")
            a("s_lshr_b32 s33, s33, 6\ns_sub_u32 s39, s33, 1")
            a(f"s_sub_u32 s46, s46, {NSKIP*8192}\ns_and_b32 s46, s46, s57\nv_lshl_add_u32 v2, v0, 4, s46")
            a("s_add_u32 s8, s8, s3\ns_addc_u32 s9, s9, 0")
            for tt in range(NSKIP):
                for k in range(4): a(f"v_mov_b32 v{KR+4*tt+k}, 0\nv_mov_b32 v{VR+4*tt+k}, 0")
            sel_masks(0, 12, 3)
            a("v_bfe_u32 v3, v0, 3, 1\nv_lshrrev_b32 v4, 4, v0\nv_and_b32 v20, 3, v0")
            a("v_lshlrev_b32 v20, 4, v20\nv_lshl_add_u32 v20, v4, 6, v20\nv_lshl_add_u32 v20, v3, 8, v20")
            for k in range(4): a(f"v_mov_b32 v{16+k}, 0")
            if xpat: a("s_getreg_b32 s63, hwreg(HW_REG_XCC_ID)\ns_and_b32 s63, s63, 1")
            a("s_lshl_b32 s3, s39, 2\nv_mov_b32 v3, s3\nv_mov_b32 v4, 1")
            a("s_waitcnt lgkmcnt(0)")
            a("s_bfe_u32 s34, s30, 0x50008\ns_bfe_u32 s35, s30, 0x20010\ns_bfe_u32 s36, s30, 0x50018")
        if t == NSKIP + D - 1:
            STAMP(2)
            a(f"ds_write_b32 v3, v4 offset:{CNT}")
        if t == 17: STAMP(3)
        if qmark and t == qmark: a(f"ds_write_b32 v3, v4 offset:{QM}")
    a("s_cmp_eq_u32 s35, 1\ns_cbranch_scc0 L_nowo")
    srd(12, 4096*576*2)
    dma_chunk128(0, 3, 4)
    a("v_and_b32 v4, 3, v4\nv_lshrrev_b32 v5, 5, v0\nv_lshl_add_u32 v4, v5, 4, v4")
    a("v_mul_u32_u24 v4, 1152, v4\nv_add_u32 v3, v3, v4")
    a("s_lshl_b32 s44, s31, 9\ns_lshr_b32 s45, s39, 1\ns_lshl_b32 s45, s45, 7\ns_add_u32 s44, s44, s45")
    a("s_and_b32 s45, s39, 1\ns_lshl_b32 s45, s45, 2\ns_add_u32 s44, s44, s45")
    a("s_mul_i32 s44, s44, 1152\ns_lshl_b32 s45, s36, 7\ns_add_u32 s44, s44, s45")
    a(f"s_lshl_b32 s47, s39, 13\ns_add_u32 s47, s47, {W}")
    for k in range(8):
        u, eh, gh = k >> 2, (k >> 1) & 1, k & 1
        a(f"s_add_u32 s45, s44, {(64*u + 32*gh + 8*eh)*1152}")
        a(f"s_add_u32 m0, s47, {k*1024}")
        a(f"s_waitcnt vmcnt({D-1})")
        a("buffer_load_dwordx4 v3, s[40:43], s45 offen nt lds")
    a("L_nowo:")
    ORDER = [0, 1, 4, 5, 6, 7, 2, 3] if stagger else list(range(8))
    s2_pre(3)
    a("s_lshl_b32 s3, s39, 2\nv_mov_b32 v1, s3")
    assert J >= NSKIP + D - 1
    for t in range(J): load_unit("V", t)
    nextv = [J]
    def more_v():
        if nextv[0] < NMAX: load_unit("V", nextv[0]); nextv[0] += 1
    for t in range(NSKIP):
        a(f"s_cmp_ge_u32 s34, {NMAX-t}\ns_cselect_b32 s{94+t}, 0, 0xff800000")
    a(f"s_mov_b32 s61, {f2u(128**-0.5)}\ns_mov_b32 s62, {f2u(LOG2E)}\ns_mov_b32 s46, {SPIN*8}")
    more_v()
    STAMP(4)
    a("L_qw:")
    a(f"ds_read_b128 v[8:11], v20 offset:{Q}\ns_waitcnt lgkmcnt(0)")
    a("v_max3_u32 v3, v8, v9, v10\nv_max_u32 v3, v3, v11\nv_cmp_eq_u32 vcc, -1, v3\ns_cbranch_vccz L_qok")
    a("s_sleep 1\ns_sub_u32 s46, s46, 1\ns_cbranch_scc0 L_qw")
    a("L_qok:")
    STAMP(5)
    k_ = lambda t, r=0: KR + 4*t + r
    def diag(t):
        a(f"v_mov_b32_dpp v{k_(t)}, v{k_(t)} quad_perm:[0,0,0,0] {DPPF}")
        for r in (1, 2, 3): a(f"v_add_f32_dpp v{k_(t)}, v{k_(t,r)}, v{k_(t)} quad_perm:[{r},{r},{r},{r}] {DPPF}")
    LAG = 3
    for t in range(NMAX + LAG):
        if t < NMAX: a(f"v_mfma_f32_16x16x32_bf16 v[{k_(t)}:{k_(t,3)}], v[{k_(t)}:{k_(t,3)}], v[8:11], 0")
        if t >= LAG: diag(t - LAG)
    more_v()
    for t in range(0, NMAX, 2):
        if not noround: round2(k_(t), k_(t+1), 3)
        a(f"v_mul_f32 v{k_(t)}, s61, v{k_(t)}\nv_mul_f32 v{k_(t+1)}, s61, v{k_(t+1)}")
        if not noround: round2(k_(t), k_(t+1), 3)
    for t in range(NSKIP): a(f"v_add_f32 v{k_(t)}, s{94+t}, v{k_(t)}")
    a(f"v_max_f32 v4, v{k_(0)}, v{k_(1)}")
    for t in range(2, NMAX, 2): a(f"v_max3_f32 v4, v{k_(t)}, v{k_(t+1)}, v4")
    more_v()
    for sw in (16, 32):
        a(f"v_mov_b32 v3, v4\nv_permlane{sw}_swap_b32 v4, v3\nv_max_f32 v4, v4, v3")
    a("v_mul_f32 v4, s62, v4")
    a("v_mov_b32 v5, 0")
    for t in range(NMAX):
        a(f"v_fma_f32 v{k_(t)}, v{k_(t)}, s62, -v4")
    for t in range(NMAX):
        a(f"v_exp_f32 v{k_(t)}, v{k_(t)}")
    for t in range(NMAX):
        a(f"v_add_f32 v5, v5, v{k_(t)}")
        a(f"v_cvt_pk_bf16_f32 v{k_(t)}, v{k_(t)}, v{k_(t)}")
    for sw in (16, 32):
        a(f"v_mov_b32 v3, v5\nv_permlane{sw}_swap_b32 v5, v3\nv_add_f32 v5, v5, v3")
    a("v_bfe_u32 v3, v0, 3, 1\ns_lshl_b32 s3, s39, 3\nv_lshl_add_u32 v3, v3, 6, s3")
    a(f"ds_write_b64 v3, v[4:5] offset:{STATW}")
    STAMP(6)
    more_v()
    for t in range(NMAX):
        for r in (3, 2, 1, 0): a(f"v_and_b32 v{k_(t,r)}, v{12+r}, v{k_(t)}")
    a("s_lshl_b32 s3, s39, 10\nv_lshl_add_u32 v3, v0, 4, s3")
    def pv(t): a(f"v_mfma_f32_16x16x32_bf16 v[16:19], v[{k_(t)}:{k_(t,3)}], v[{VR+4*t}:{VR+4*t+3}], v[16:19]")
    done = 0
    while nextv[0] < NMAX:
        n = nextv[0]; more_v()
        if n == NMAX - 1 - lvpos: a(f"ds_write_b32 v1, v5 offset:{LV}")
        while done <= n - D: pv(done); done += 1
    def drain(done, extra):
        while done < NMAX:
            a(f"s_waitcnt vmcnt({extra + min(NMAX-1-done, D-1)})")
            hi = max(done, NMAX - D)
            while done <= hi: pv(done); done += 1
        STAMP(7)
        a(f"ds_write_b128 v3, v[16:19] offset:{OP}")
        a("s_waitcnt lgkmcnt(0)\ns_barrier")
        STAMP(8)
    assert done >= 8
    a("s_cmp_eq_u32 s35, 1\ns_cbranch_scc1 L_s1pre")
    drain(done, 0)
    a("s_branch L_dyn")
    a("L_s1pre:")
    a(f"s_lshr_b32 s3, s39, 1\ns_lshl_b32 s3, s3, 6\ns_mul_i32 s44, s31, {H2S}\ns_add_u32 s3, s3, s44\ns_add_u32 s3, s3, {ST}")
    a("v_and_b32 v1, 48, v0\nv_add_u32 v1, s3, v1")
    a(f"s_lshl3_add_u32 s3, s31, s39\ns_lshl_b32 s3, s3, 11\ns_add_u32 s3, s3, {H1}")
    a("v_lshl_add_u32 v2, v0, 4, s3")
    tr_addr128(0, 4, 8, 47)
    for u in range(2):
        for ct in range(4):
            for eh in range(2):
                r = WOF + (u*4 + ct)*4 + 2*eh
                a(f"ds_read_b64_tr_b16 v[{r}:{r+1}], v{4+ct} offset:{(32*u + 16*eh)*128}")
    a("s_lshl_b32 s3, s39, 9\nv_lshl_add_u32 v10, v0, 3, s3\nv_mov_b32 v11, 0")
    a(f"s_mov_b32 s46, {SPIN}")
    drain(done, 0)
    a(f"ds_read_b32 v4, v11 offset:{ROLE + 8}")
    a("global_load_dwordx4 v[20:23], v1, s[28:29] sc1")
    a("s_waitcnt lgkmcnt(0)\nv_add_u32 v2, v2, v4")
    a("global_load_dwordx4 v[24:27], v2, s[28:29] sc1\nglobal_load_dwordx4 v[28:31], v2, s[28:29] offset:1024 sc1")
    a("s_waitcnt vmcnt(2)")
    a("L_fw:")
    a("v_max3_u32 v8, v20, v21, v22\nv_max_u32 v8, v8, v23\nv_cmp_eq_u32 vcc, -1, v8\ns_cbranch_vccnz L_fretry")
    a("L_fok:")
    a("v_max3_f32 v8, v20, v21, v22\nv_max_f32 v8, v8, v23\nv_mov_b32 v9, v8\nv_permlane16_swap_b32 v8, v9\nv_max_f32 v8, v8, v9")
    for r in range(4): a(f"v_sub_f32 v{20+r}, v{20+r}, v8")
    for r in range(4): a(f"v_exp_f32 v{20+r}, v{20+r}")
    a("v_add_f32 v8, v20, v21\nv_add_f32 v9, v22, v23\nv_add_f32 v8, v8, v9\nv_mov_b32 v9, v8\nv_permlane16_swap_b32 v8, v9\nv_add_f32 v8, v8, v9")
    a("v_rcp_f32 v8, v8")
    for r in range(4): a(f"v_mul_f32 v{20+r}, v8, v{20+r}")
    a(f"s_mov_b32 s46, {SPIN}")
    STAMP(9)
    a("L_s1poll:")
    if p1:
        a("s_waitcnt vmcnt(0)\ns_branch L_h1c")
        ppoll("h1", [24, 28], [f"global_load_dwordx4 v[{24+4*k}:{27+4*k}], v2, s[28:29] offset:{1024*k} sc1" for k in range(2)], p1, 0, 8, init=False)
    else:
        a("s_waitcnt vmcnt(0)")
        a("v_max3_u32 v8, v24, v25, v26\nv_max3_u32 v9, v27, v28, v29\nv_max3_u32 v8, v30, v31, v8\nv_max_u32 v8, v8, v9")
        a("v_cmp_eq_u32 vcc, -1, v8\ns_cbranch_vccnz L_s1retry")
    a("L_s1go:")
    STAMP(10)
    for ct in range(4):
        for u in range(2):
            r = WOF + (u*4 + ct)*4; d = 32 + 4*ct
            a(f"v_mfma_f32_16x16x32_bf16 v[{d}:{d+3}], v[{24+4*u}:{27+4*u}], v[{r}:{r+3}], {'0' if u == 0 else f'v[{d}:{d+3}]'}")
    def scale(ct):
        d = 32 + 4*ct
        a(f"v_pk_mul_f32 v[{d}:{d+1}], v[{d}:{d+1}], v[20:21]\nv_pk_fma_f32 v[{d}:{d+1}], v[{d+2}:{d+3}], v[22:23], v[{d}:{d+1}]\nv_add_f32 v{d}, v{d}, v{d+1}")
    scale(0); scale(1); scale(2)
    a("v_permlane16_swap_b32 v32, v36")
    scale(3)
    a("v_add_f32 v32, v32, v36")
    a("v_permlane16_swap_b32 v40, v44\nv_add_f32 v33, v40, v44")
    a(f"ds_write_b64 v10, v[32:33] offset:{RED}")
    STAMP(11)
    a("s_waitcnt lgkmcnt(0)\ns_barrier")
    if stamp: a("s_branch L_fin")
    a("L_exit:\ns_endpgm")
    a("L_s1retry:")
    a("s_sub_u32 s46, s46, 1\ns_cbranch_scc1 L_s1go")
    if s1sleep: a(f"s_sleep {s1sleep}")
    if masked: a("s_mov_b64 exec, vcc")
    a("global_load_dwordx4 v[24:27], v2, s[28:29] sc1\nglobal_load_dwordx4 v[28:31], v2, s[28:29] offset:1024 sc1")
    if masked: a("s_mov_b64 exec, -1")
    a("s_branch L_s1poll")
    a("L_fretry:")
    a("s_sub_u32 s46, s46, 1\ns_cbranch_scc1 L_fok")
    a("global_load_dwordx4 v[20:23], v1, s[28:29] sc1\ns_waitcnt vmcnt(0)\ns_branch L_fw")

    a("L_service:")
    a("s_and_b32 s31, s2, 7\ns_lshr_b32 s37, s32, 4\ns_lshl1_add_u32 s37, s31, s37")
    a("s_lshl2_add_u32 s47, s32, L_table-L_pc")
    a("s_load_dword s30, s[48:49], s47")
    a("s_bfe_u32 s38, s32, 0x20002\ns_and_b32 s39, s32, 3")
    a("s_getreg_b32 s51, hwreg(HW_REG_XCC_ID)")
    a(f"s_and_b32 s51, s51, 15\ns_movk_i32 s57, {Q}")
    a(f"s_mov_b32 s3, {WQ}"); tr_addr128(0, 44, 41, 3, (0, 1, 2, 3))
    a("v_bfe_u32 v4, v0, 3, 1\nv_mul_u32_u24 v4, 1152, v4\nv_lshrrev_b32 v41, 4, v0\nv_lshl_add_u32 v4, v41, 3, v4")
    a("s_mul_i32 s3, s38, 288\nv_add_u32 v4, s3, v4")
    a("v_and_b32 v3, 16, v0\nv_cmp_ne_u32 s[58:59], 0, v3")
    a(f"s_lshl2_add_u32 s3, s37, s38\ns_lshl3_add_u32 s3, s3, s39\ns_lshl_b32 s3, s3, 8\ns_add_u32 s3, s3, {QP}")
    a("v_and_b32 v43, 31, v0\nv_lshl_add_u32 v43, v43, 3, s3\nv_lshrrev_b32 v3, 5, v0\nv_lshl_add_u32 v43, v3, 10, v43")
    a("v_and_b32 v6, 28, v40")
    a(f"s_waitcnt lgkmcnt(0)\ns_load_dword s62, s[28:29], {EP}")
    a(f"s_mul_i32 s56, s31, {H2S}\ns_add_u32 s56, s56, {H2}")
    a("s_cmp_eq_u32 s32, 2\ns_cbranch_scc0 L_c1")
    a("v_mov_b32 v58, -1\nv_mov_b32 v59, -1\nv_lshl_add_u32 v3, v0, 4, s56")
    for k in range(3): a(f"global_store_dwordx4 v3, v[56:59], s[28:29] offset:{1024*k} sc1")
    a("L_c1:")
    a("s_waitcnt vmcnt(0)")
    if tlb > 2:
        a("v_min_u32 v41, 2, v0\nv_lshlrev_b32 v41, 21, v41\nv_mov_b32 v42, 0")
        a("global_load_dword v19, v41, s[20:21] nt\nglobal_load_dword v19, v42, s[18:19]\nglobal_load_dword v19, v42, s[22:23]")
    for r in range(9):
        a(f"v_lshlrev_b32 v{20+2*r}, 16, v{10+r}\nv_and_b32 v{21+2*r}, 0xffff0000, v{10+r}")
        a(f"ds_write_b32 v2, v{10+r} offset:{XR + 4*r}")
    pkadd(20, 22, 38)
    for r in range(2, 9): pkadd(38, 20 + 2*r)
    a("v_add_f32 v38, v38, v39")
    def half_sum(r, tmp):
        row_sum(r); a(f"v_mov_b32 v{tmp}, v{r}\nv_permlane16_swap_b32 v{r}, v{tmp}\nv_add_f32 v{r}, v{r}, v{tmp}")
    half_sum(38, 39)
    a(f"v_mul_f32 v38, {f2u(-1/576)}, v38\nv_mov_b32 v39, v38")
    for r in range(9):
        pkadd(20 + 2*r, 38, 10)
        a("v_pk_mul_f32 v[12:13], v[10:11], v[10:11]" if r == 0 else "v_pk_fma_f32 v[12:13], v[10:11], v[10:11], v[12:13]")
    a("v_add_f32 v42, v12, v13")
    half_sum(42, 41)
    a(f"v_mul_f32 v42, {f2u(1/576)}, v42")
    round2(38, 42, 41)
    a(f"v_mov_b32 v39, v38\nv_add_f32 v42, {f2u(1e-5)}, v42"); round1(42)
    a("v_sqrt_f32 v42, v42"); round1(42)
    a("v_rcp_f32 v10, v42\nv_mov_b32 v11, v10")
    for r in range(9):
        x, y = 20 + 2*r, 21 + 2*r
        pkadd(x, 38); round2(x, y, 41)
        a(f"v_pk_mul_f32 v[{x}:{y}], v[{x}:{y}], v[10:11]")
        a(f"v_cvt_pk_bf16_f32 v{x}, v{x}, v{y}")
        a(f"ds_write_b32 v2, v{x} offset:{XN + 4*r}")
    a(f"s_mov_b32 s46, {SPIN*8}")
    a("L_wqw:")
    a(f"ds_read_b32 v3, v6 offset:{CNT}\ns_waitcnt lgkmcnt(0)")
    a("v_cmp_eq_u32 vcc, 0, v3\ns_cbranch_vccz L_wqok")
    a("s_sleep 1\ns_sub_u32 s46, s46, 1\ns_cbranch_scc0 L_wqw")
    a("L_wqok:")
    STAMP(1)
    for v in range(9): a(f"ds_read_b64 v[{20+2*v}:{21+2*v}], v4 offset:{XN + 32*v}")
    a(f"s_mul_i32 s63, s62, {TAGMUL}\ns_add_u32 s63, s63, {TAGADD}")
    a("s_add_u32 s62, s62, 1\ns_and_b32 s60, s62, 15\ns_xor_b32 s61, s60, 8")
    a("s_bfe_u32 s35, s30, 0x20010\ns_bfe_u32 s36, s30, 0x50018")
    for ct in range(4):
        for v in range(9):
            r = 64 + (ct*9 + v)*2
            a(f"ds_read_b64_tr_b16 v[{r}:{r+1}], v{44+ct} offset:{2048*v}")
    a("s_waitcnt lgkmcnt(0)")
    for v in range(0, 9, 2):
        for ct in range(4):
            r = 64 + (ct*9 + v)*2; d = 140 + 4*ct
            if v < 8: a(f"v_mfma_f32_16x16x32_bf16 v[{d}:{d+3}], v[{20+2*v}:{23+2*v}], v[{r}:{r+3}], {'0' if v == 0 else f'v[{d}:{d+3}]'}")
            else: a(f"v_mfma_f32_16x16x16_bf16 v[{d}:{d+3}], v[{20+2*v}:{21+2*v}], v[{r}:{r+1}], v[{d}:{d+3}]")
    a("v_mov_b32 v23, s63\nv_mov_b32 v22, -16")
    a("v_cndmask_b32 v46, v140, v144, s[58:59]\nv_cndmask_b32 v47, v148, v152, s[58:59]")
    a("v_add_u32 v46, 8, v46\nv_add_u32 v47, 8, v47\nv_and_or_b32 v46, v46, v22, s60\nv_and_or_b32 v47, v47, v22, s61")
    a("global_store_dwordx2 v43, v[46:47], s[28:29]")
    STAMP(2)
    a(f"s_lshl_b32 s44, s31, 5\ns_add_u32 s44, s44, s32\ns_lshl_b32 s3, s44, 9\ns_add_u32 s3, s3, {H1}")
    a("v_lshl_add_u32 v45, v0, 3, s3")
    a("global_store_dwordx2 v45, v[56:57], s[28:29]")
    a("v_mov_b32 v22, s51")
    a("s_cmp_eq_u32 s32, 2\ns_cbranch_scc0 L_c2")
    a(f"s_lshl_b32 s3, s31, 7\ns_add_u32 s3, s3, {CFL}\nv_lshl_add_u32 v4, v0, 3, s3\ns_mov_b64 exec, 0xffff")
    a("global_store_dwordx2 v4, v[22:23], s[28:29] sc1\ns_mov_b64 exec, -1")
    a("L_c2:")
    a(f"s_lshl3_add_u32 s3, s44, {FL}\nv_mov_b32 v4, s3\ns_lshl_b32 s3, s44, 6\ns_add_u32 s3, s3, {FLF}\nv_mov_b32 v27, s3")
    a(f"v_add_u32 v43, {FAR}, v43")
    a(f"s_lshl_b32 s3, s37, 13\ns_and_b32 s46, s32, 15\ns_lshl4_add_u32 s3, s46, s3\ns_add_u32 s3, s3, {H1}")
    a("v_lshrrev_b32 v8, 1, v0\nv_lshl_add_u32 v8, v8, 8, s3\nv_and_b32 v9, 1, v0\nv_lshl_add_u32 v8, v9, 3, v8")
    a("s_lshl_b32 s3, s36, 8\ns_add_u32 s3, s3, s56\nv_lshl_add_u32 v5, v0, 2, s3")
    a("s_and_b32 s3, s32, 16\ns_lshl1_add_u32 s46, s3, s46\ns_lshl2_add_u32 s46, s46, s56\ns_add_u32 s46, s46, 2304")
    a("v_bfe_u32 v9, v0, 3, 1\nv_lshl_add_u32 v9, v9, 6, s46")
    a(f"s_bfe_u32 s45, s32, 0x10003\ns_lshl3_add_u32 s44, s37, s45\ns_lshl_b32 s44, s44, 10\ns_add_u32 s44, s44, {QP + 4096}")
    a("v_lshl_add_u32 v44, v0, 4, s44")
    a("s_waitcnt vmcnt(0)")
    a("s_mov_b64 exec, 1\nglobal_store_dwordx2 v4, v[22:23], s[28:29]\ns_mov_b64 exec, -1")
    def announce():
        a("global_store_dwordx2 v43, v[46:47], s[28:29] sc1\ns_waitcnt vmcnt(0)")
        a("s_mov_b64 exec, 1\nglobal_store_dwordx2 v27, v[22:23], s[28:29] sc1\ns_mov_b64 exec, -1")
    STAMP(3)
    a(f"s_mov_b32 s46, 0")
    a("L_qpoll:")
    for k in range(4): a(f"global_load_dwordx4 v[{64+4*k}:{67+4*k}], v44, s[28:29] offset:{2048*k - 4096} sc1")
    a("s_waitcnt vmcnt(0)")
    for k in range(16): a(f"v_xor_b32 v{64+k}, s{60 + (k & 1)}, v{64+k}")
    a("v_or_b32 v20, v64, v65")
    for k in range(1, 8): a(f"v_or3_b32 v20, v20, v{64+2*k}, v{65+2*k}")
    a("v_and_b32 v20, 15, v20\nv_cmp_ne_u32 vcc, 0, v20\ns_cbranch_vccz L_qgo")
    a(f"s_add_u32 s46, s46, 1\ns_cmp_lt_u32 s46, {NFAIL}\ns_cbranch_scc1 L_qpoll")
    a(f"s_cmp_lt_u32 s46, {SPIN}\ns_cbranch_scc1 L_qslow")
    a("L_qgo:")
    pkadd(64, 68); pkadd(66, 70); pkadd(72, 76); pkadd(74, 78); pkadd(64, 72); pkadd(66, 74)
    a("v_cvt_pk_bf16_f32 v20, v64, v66\nv_cvt_pk_bf16_f32 v21, v65, v67")
    a(f"v_and_b32 v4, 0xc0, v40\nv_add3_u32 v4, v4, v40, s57\nds_write2_b32 v4, v20, v21 offset0:0 offset1:16")
    STAMP(4)
    a(f"s_lshl_b32 s3, s31, 8\ns_add_u32 s3, s3, {FL}\nv_lshl_add_u32 v44, v0, 3, s3\nv_and_b32 v25, 7, v0\nv_lshlrev_b32 v25, 7, v25\nv_add_u32 v25, {CFL}, v25")
    a("v_cmp_gt_u32 s[58:59], 32, v0\nv_cndmask_b32 v44, v25, v44, s[58:59]")
    a(f"s_lshl_b32 s3, s31, 11\ns_add_u32 s3, s3, {FLF}\nv_and_b32 v26, 31, v0\nv_lshl_add_u32 v26, v26, 6, s3")
    a("global_load_dwordx2 v[64:65], v44, s[28:29] sc1")
    s2_pre(2)
    sel_masks(0, 12, 2)
    a("s_mov_b32 s46, 0\ns_mov_b32 s34, 0")
    if not local: a("s_branch L_far")
    a("L_fpoll:")
    a("s_waitcnt vmcnt(0)\nv_cmp_ne_u32 s[44:45], s63, v65\nv_cmp_ne_u32 vcc, s51, v64")
    a("s_andn2_b32 s3, vcc_lo, s44\ns_cbranch_scc1 L_far")
    a("s_cmp_eq_u64 s[44:45], 0\ns_cbranch_scc0 L_fretry2")
    a("L_fgo:")
    a("s_cmp_eq_u32 s35, 1\ns_cbranch_scc0 L_nof")
    a(f"s_lshl3_add_u32 s3, s31, s36\ns_lshl_b32 s3, s3, 11\ns_add_u32 s3, s3, {H1}\nv_lshl_add_u32 v42, v0, 5, s3")
    a("s_cmp_eq_u32 s36, 8\ns_cbranch_scc0 L_pw")
    a(f"s_add_u32 s3, s56, 2304\nv_add_u32 v42, s3, v40")
    a("L_pw:")
    a("global_load_dword v58, v42, s[28:29] sc1")
    a("L_nof:")
    STAMP(5)
    a(f"v_and_b32 v4, 15, v0\nv_lshlrev_b32 v4, 3, v4\ns_mov_b32 s46, {SPIN*8}")
    a("L_stw:")
    a(f"ds_read_b64 v[60:61], v4 offset:{STATW}\ns_waitcnt lgkmcnt(0)")
    a("v_cmp_eq_u32 vcc, 0, v61\ns_cbranch_vccz L_stok")
    a("s_sleep 2\ns_sub_u32 s46, s46, 1\ns_cbranch_scc0 L_stw")
    a("L_stok:")
    STAMP(6)
    def ticket():
        a("s_mov_b32 s38, 1\ns_xor_b32 s39, s36, s31\ns_and_b32 s39, s39, 1\ns_lshl_b32 s3, s39, 7")
        if loct == 1: a("s_lshl_b32 s3, s31, 5")
        if loct == 2:
            a("s_lshr_b32 s39, s31, 1\ns_xor_b32 s3, s39, s31\ns_and_b32 s3, s3, 1\ns_lshl_b32 s3, s3, 7\ns_lshl_b32 s39, s39, 3\ns_lshl_b32 s38, 1, s39")
        a("s_cmp_eq_u32 s35, 1\ns_cbranch_scc1 L_notick")
        if loct == 3: a("s_add_u32 s3, s56, 2560\ns_atomic_add s38, s[28:29], s3 glc")
        elif loct == 4: a("s_mov_b32 s38, s36")
        else: a("s_atomic_add s38, s[26:27], s3 glc")
        a("L_notick:")
    if not tick_lv: ticket()
    a("v_mov_b32 v62, v60"); oct_red(62, "v_max_f32")
    a("v_sub_f32 v60, v60, v62\nv_exp_f32 v60, v60\nv_mul_f32 v61, v61, v60"); oct_red(61, "v_add_f32")
    a("v_rcp_f32 v59, v61\nv_log_f32 v61, v61\nv_mul_f32 v60, v60, v59\nv_add_f32 v62, v61, v62")
    a("s_mov_b64 exec, 0x101\ns_cmp_eq_u32 s34, 0\ns_cbranch_scc1 L_stnear")
    a("global_store_dword v9, v62, s[28:29] sc1\ns_branch L_stdone")
    a("L_stnear:\nglobal_store_dword v9, v62, s[28:29]\nL_stdone:\ns_mov_b64 exec, -1")
    a(f"v_lshrrev_b32 v4, 1, v4\nds_write_b32 v4, v60 offset:{CF}")
    a("v_lshrrev_b32 v4, 5, v0\nv_lshlrev_b32 v4, 5, v4")
    a("s_waitcnt lgkmcnt(0)")
    a(f"ds_read_b128 v[48:51], v4 offset:{CF}\nds_read_b128 v[52:55], v4 offset:{CF+16}")
    def lv_wait(name, all_):
        a(f"v_and_b32 v4, 28, v40\ns_mov_b32 s46, {SPIN*8}")
        a(f"L_{name}w:")
        a(f"ds_read_b32 v3, v4 offset:{LV}\ns_waitcnt lgkmcnt(0)")
        a(f"v_cmp_eq_u32 vcc, 0, v3\ns_cbranch_vccz L_{name}ok" if all_ else f"v_cmp_ne_u32 vcc, 0, v3\ns_cbranch_vccnz L_{name}ok")
        a(f"s_sleep 1\ns_sub_u32 s46, s46, 1\ns_cbranch_scc0 L_{name}w")
        a(f"L_{name}ok:")
    if tick_lv:
        lv_wait("lv", False)
        ticket()
    a("s_waitcnt lgkmcnt(0)")
    a("s_mov_b32 s47, 0")
    if loct == 3: a("s_add_u32 s38, s38, 1")
    if loct == 2: a("s_mul_i32 s44, s38, 0x01010101\ns_lshr_b32 s44, s44, 24\ns_lshr_b32 s38, s38, s39\ns_and_b32 s38, s38, 0xff")
    for th in ntr: a(f"s_cmp_ge_u32 s{44 if loct == 2 else 38}, {th}\ns_addc_u32 s47, s47, 0")
    a(f"s_cmp_lt_u32 s38, {2 if loct else 9}\ns_cselect_b32 s47, {ntrs}, s47")
    NTR = max(len(ntr), ntrs)
    if loct:
        a("s_lshr_b32 s44, s38, 1\ns_lshl_b32 s45, s44, 2\ns_mov_b32 s58, 0x65421003\ns_mov_b32 s59, 7\ns_lshr_b64 s[58:59], s[58:59], s45\ns_and_b32 s45, s58, 7")
        a("s_lshl3_add_u32 s45, s31, s45\ns_add_u32 s3, s31, 64\ns_cmp_eq_u32 s44, 1\ns_cselect_b32 s45, s3, s45")
        a("s_and_b32 s3, s38, 1\ns_lshl1_add_u32 s45, s45, s3\ns_mul_i32 s3, s31, 5\ns_add_u32 s3, s3, s38\ns_add_u32 s3, s3, 126")
        a("s_cmp_lt_u32 s38, 18\ns_cselect_b32 s38, s45, s3")
    else:
        a("s_lshl3_add_u32 s44, s38, 3\ns_sub_u32 s45, s38, 5\ns_mul_i32 s45, s45, 37\ns_lshr_b32 s45, s45, 8\ns_add_u32 s45, s45, s38\ns_sub_u32 s45, s45, 9")
        a("s_cmp_lt_u32 s38, 9\ns_cselect_b32 s44, s44, s45\ns_cmp_lt_u32 s38, 72\ns_cselect_b32 s38, s44, s38\ns_lshl1_add_u32 s38, s38, s39")
    a(f"s_and_b32 s3, s62, 0xfff\ns_lshl4_add_u32 s3, s3, s47")
    a(f"v_mov_b32 v4, 0\nv_mov_b32 v2, s38\nv_mov_b32 v3, s3\nds_write_b64 v4, v[2:3] offset:{ROLE}")
    a(f"v_mov_b32 v2, s34\nds_write_b32 v4, v2 offset:{ROLE + 8}")
    if NTR:
        a("s_cmp_eq_u32 s35, 1\ns_cbranch_scc1 L_notr\ns_cmp_lt_u32 s38, 144\ns_cbranch_scc0 L_notr\ns_cmp_eq_u32 s47, 0\ns_cbranch_scc1 L_notr")
        lv_wait("lv2", lvall)
        a(f"s_mul_i32 s45, s38, {32*1152}")
        for rb in range(NTR):
            if rb: a(f"s_cmp_gt_u32 s47, {rb}\ns_cbranch_scc0 L_notr")
            for lc in range(9):
                a(f"s_mov_b32 m0, {W + 36864 + 4096*lc + 1024*rb}")
                if rb or lc: a(f"s_add_u32 s45, s45, {128 if lc else 8*1152 - 8*128}")
                a("buffer_load_dwordx4 v7, s[52:55], s45 offen nt lds")
        a("L_notr:")
    a("v_lshlrev_b32 v4, 4, v0")
    a("s_waitcnt lgkmcnt(0)")
    STAMP(7)
    a("s_barrier")
    for w in range(8): a(f"ds_read_b128 v[{64+4*w}:{67+4*w}], v4 offset:{OP + 1024*w}")
    STAMP(8)
    for w in range(8):
        a(f"s_waitcnt lgkmcnt({0 if stamp else 7-w})")
        c = 48 + (w & ~1); sel = "op_sel:[0,1,0]" if w & 1 else "op_sel_hi:[1,0,1]"
        for k in (0, 2):
            if w == 0: a(f"v_pk_mul_f32 v[{60+k}:{61+k}], v[{64+k}:{65+k}], v[48:49] op_sel_hi:[1,0]")
            else: a(f"v_pk_fma_f32 v[{60+k}:{61+k}], v[{64+4*w+k}:{65+4*w+k}], v[{c}:{c+1}], v[{60+k}:{61+k}] {sel}")
    a("s_cmp_eq_u32 s34, 0")
    a("v_cvt_pk_bf16_f32 v60, v60, v61\nv_cvt_pk_bf16_f32 v61, v62, v63")
    a("s_cbranch_scc0 L_pubfar")
    a("global_store_dwordx2 v8, v[60:61], s[28:29]")
    a("L_pubdone:")
    STAMP(9)
    a("s_cmp_eq_u32 s35, 1\ns_cbranch_scc0 L_dyns")
    a("v_lshlrev_b32 v4, 3, v0")
    a("s_barrier")
    for w in range(4): a(f"ds_read2st64_b64 v[{64+4*w}:{67+4*w}], v4 offset0:{(RED + 1024*w)//512} offset1:{(RED + 1024*w + 512)//512}")
    STAMP(10)
    for w in range(4):
        a(f"s_waitcnt lgkmcnt({0 if stamp else 3-w})")
        pkadd(64 + 4*w, 66 + 4*w)
        if w: pkadd(64, 64 + 4*w)
    a("v_cvt_pk_bf16_f32 v64, v64, v65\nglobal_store_dword v5, v64, s[28:29] sc1")
    STAMP(11)
    a("s_branch L_fin" if stamp else "s_endpgm")
    a("L_qslow:")
    a(f"s_cmp_eq_u32 s46, {NFAIL}\ns_cbranch_scc0 L_qnoann")
    announce()
    a("L_qnoann:")
    a(f"s_lshl_b32 s3, s37, 10\ns_add_u32 s3, s3, {FLF}\nv_and_b32 v26, 15, v0\nv_lshl_add_u32 v26, v26, 6, s3")
    a("global_load_dwordx2 v[64:65], v26, s[28:29] sc1\ns_waitcnt vmcnt(0)")
    a(f"v_cmp_ne_u32 vcc, s63, v65\ns_cbranch_vccnz L_qpoll\nv_or_b32 v44, {FAR}, v44\ns_branch L_qpoll")
    a("L_fretry2:")
    a(f"s_add_u32 s46, s46, 1\ns_cmp_lt_u32 s46, {NFAIL}\ns_cbranch_scc1 L_fagain")
    a(f"s_cmp_eq_u32 s46, {NFAIL}\ns_cbranch_scc0 L_fnoann")
    announce()
    a("L_fnoann:")
    a("global_load_dwordx2 v[66:67], v26, s[28:29] sc1\ns_waitcnt vmcnt(0)")
    a("v_cmp_ne_u32 s[44:45], s63, v67\nv_cmp_ne_u32 vcc, s51, v66\ns_andn2_b32 s3, vcc_lo, s44\ns_cbranch_scc1 L_far")
    a(f"s_cmp_lt_u32 s46, {SPIN}\ns_cbranch_scc0 L_fgo")
    a("L_fagain:")
    a("global_load_dwordx2 v[64:65], v44, s[28:29] sc1\ns_branch L_fpoll")
    a("L_far:")
    announce()
    a(f"s_mov_b32 s34, {FAR}\nv_add_u32 v45, s34, v45\nv_add_u32 v8, s34, v8")
    a("global_store_dwordx2 v45, v[56:57], s[28:29] sc1")
    a("v_add_u32 v26, 8, v26\nv_cndmask_b32 v44, v25, v26, s[58:59]")
    a("s_waitcnt vmcnt(0)")
    a("s_mov_b64 exec, 1\nglobal_store_dwordx2 v27, v[22:23], s[28:29] offset:8 sc1\ns_mov_b64 exec, -1")
    a(f"s_mov_b32 s46, {SPIN}")
    a("L_far2:")
    a("s_sleep 8\nglobal_load_dwordx2 v[64:65], v44, s[28:29] sc1\ns_waitcnt vmcnt(0)")
    a("v_cmp_ne_u32 vcc, s63, v65\ns_cbranch_vccz L_nof")
    a("s_sub_u32 s46, s46, 1\ns_cbranch_scc0 L_far2\ns_branch L_nof")
    a("L_pubfar:")
    a("global_store_dwordx2 v8, v[60:61], s[28:29] sc1\ns_branch L_pubdone")

    a("L_dyns:")
    a("s_cmp_lt_u32 s38, 144\ns_cbranch_scc1 L_s2\ns_branch L_s3s")
    a("L_dyn:")
    a(f"v_mov_b32 v4, 0\nds_read_b64 v[4:5], v4 offset:{ROLE}\ns_waitcnt lgkmcnt(0)\nv_readfirstlane_b32 s38, v4\nv_readfirstlane_b32 s47, v5")
    a("s_lshr_b32 s62, s47, 4\ns_and_b32 s47, s47, 15")
    a("s_cmp_lt_u32 s38, 144\ns_cbranch_scc0 L_s3w")
    a("L_s2:")
    s2_setup()
    a("s_barrier")
    if fine2: STAMP(1)
    if stamp: a("s_mov_b32 s35, 2")
    a("global_load_ushort v21, v21, s[18:19]")
    def h4_touch():
        a(f"s_mul_i32 s3, s33, {4*18432}\ns_lshl_b32 s44, s38, 7\ns_add_u32 s3, s3, s44\ns_add_u32 s3, s3, {H4}")
        a(f"v_lshrrev_b32 v18, 4, v0\nv_mul_u32_u24 v18, 18432, v18\nv_add_u32 v18, s3, v18")
        if h4pf < 4: a(f"global_load_dword v19, v18, s[28:29] {h4f}")
    if h4pf == 1: h4_touch()
    for n, k in enumerate(ORDER):
        if 4 <= k < 4 + NTR:
            a(f"s_cmp_gt_u32 s47, {k-4}\ns_cbranch_scc1 L_trd{k}"); s2_dma(k, 6, 7); a(f"L_trd{k}:")
            continue
        if stagger and n == 6 and EARLY2 < 6:
            if h4pf == 2: h4_touch()
            if fine2: STAMP(2)
            a("s_barrier")
        s2_dma(k, 6, 7)
    if fine2:
        STAMP(3); a("s_waitcnt vmcnt(6)"); STAMP(4); a("s_waitcnt vmcnt(2)"); STAMP(5)
    a("v_bfe_u32 v4, v0, 4, 1\nv_and_b32 v5, 15, v0\nv_lshl_add_u32 v5, v5, 1, v4")
    a("s_lshl_b32 s3, s33, 8\nv_and_b32 v6, 24, v5\nv_lshl_add_u32 v7, v6, 3, s3\nv_and_b32 v6, 3, v5\nv_lshl_add_u32 v7, v6, 4, v7")
    a("v_and_b32 v6, 4, v5\nv_lshl_add_u32 v7, v6, 1, v7")
    a("v_lshrrev_b32 v4, 4, v5\nv_mul_u32_u24 v4, 1152, v4\nv_and_b32 v6, 8, v5\nv_lshl_add_u32 v4, v6, 3, v4\nv_and_b32 v6, 7, v5\nv_lshl_add_u32 v4, v6, 2, v4")
    a(f"s_lshl_b32 s3, s33, 7\nv_add_u32 v4, s3, v4\nds_read_b32 v50, v4 offset:{XR}\nds_read_b32 v51, v4 offset:{XR + 32}")
    for k in range(4): a(f"v_and_b32 v{12+k}, 0x3f803f80, v{12+k}")
    a("v_lshrrev_b32 v5, 4, v0\nv_mul_u32_u24 v8, 80, v0")
    a("v_bfe_u32 v4, v0, 3, 1\nv_mul_u32_u24 v20, 80, v4")
    a(f"s_lshl_b32 s3, s33, 8\ns_add_u32 s3, s3, {Y}\nv_lshl_add_u32 v9, v4, 7, s3\nv_lshl_add_u32 v9, v5, 4, v9")
    a(f"v_and_b32 v4, 3, v0\nv_cmp_eq_u32 vcc, 1, v4\nv_mov_b32 v6, {ONES}\nv_cndmask_b32 v9, v9, v6, vcc")
    a("v_lshl_add_u32 v4, v5, 2, v4\nv_bfe_u32 v6, v0, 2, 2\nv_lshl_add_u32 v4, v6, 4, v4")
    a("s_lshl_b32 s3, s33, 3\nv_mul_u32_u24 v10, 80, v4\nv_add_u32 v10, s3, v10\nv_add_u32 v11, s3, v20")
    a("s_mov_b32 s60, 1\ns_movk_i32 s61, 0x100")
    if h4pf >= 4: h4_touch()
    a(f"s_lshl_b32 s3, s33, 8\ns_add_u32 s3, s3, {H2}")
    a(f"v_mul_u32_u24 v4, {H2S}, v5\nv_and_b32 v24, 15, v0\nv_lshl_add_u32 v24, v24, 4, s3\nv_add_u32 v24, v24, v4\nv_add_u32 v25, {4*H2S}, v24")
    a(f"s_sub_u32 s39, s33, 1\ns_min_u32 s39, s39, 2")
    a(f"s_mul_i32 s3, s39, {12*18432}\ns_lshl_b32 s44, s38, 7\ns_add_u32 s3, s3, s44\ns_add_u32 s3, s3, {H4}")
    a("v_mul_u32_u24 v4, 18432, v5\nv_and_b32 v28, 15, v0\nv_lshl_add_u32 v28, v28, 3, s3\nv_add_u32 v28, v28, v4")
    a(f"v_add_u32 v29, {4*18432}, v28\nv_add_u32 v30, {8*18432}, v28")
    a("v_and_b32 v4, 16, v0\nv_cmp_ne_u32 s[58:59], 0, v4")
    a("v_lshrrev_b32 v4, 2, v0\nv_lshl_add_u32 v4, v4, 6, s50\nv_and_b32 v36, 3, v0\nv_lshl_add_u32 v4, v36, 3, v4")
    a("v_bfe_u32 v36, v0, 4, 1\nv_lshl_add_u32 v36, v36, 5, v4\nv_xor_b32 v37, 32, v36")
    a(f"s_mul_i32 s3, s39, {3*4096}\ns_add_u32 s3, s3, {W+36864}"); tr_addr128(0, 32, 38, 3)
    if b5early:
        a("s_waitcnt vmcnt(2)")
        a("s_barrier")

        a("s_sub_u32 s39, s33, 1\ns_cmp_lt_u32 s39, 3\ns_cbranch_scc0 L_s2nw2")
        for ln in range(3):
            for ct in range(4):
                for eh in range(2):
                    r = 80 + 16*ln + 4*ct + 2*eh
                    a(f"ds_read_b64_tr_b16 v[{r}:{r+1}], v{32+ct} offset:{4096*ln + 2048*eh}")
        a("L_s2nw2:")
    a("s_waitcnt vmcnt(0) lgkmcnt(0)")
    STAMP(10)
    for k in range(2): a(f"global_load_dwordx4 v[{40+4*k}:{43+4*k}], v{24+k}, s[28:29] sc1")
    for ct in range(2):
        for vl in range(4):
            r = 64 + ct*8 + 2*vl
            a(f"ds_read_b64_tr_b16 v[{r}:{r+1}], v{36+ct} offset:{1024*vl}")
    a("v_lshlrev_b32 v21, 16, v21\nv_lshlrev_b32 v48, 16, v50\nv_lshlrev_b32 v49, 16, v51\nv_and_b32 v50, 0xffff0000, v50\nv_and_b32 v51, 0xffff0000, v51")
    if not b5early:
        a("s_barrier")

        a("s_sub_u32 s39, s33, 1\ns_cmp_lt_u32 s39, 3\ns_cbranch_scc0 L_s2nw2")
        for ln in range(3):
            for ct in range(4):
                for eh in range(2):
                    r = 80 + 16*ln + 4*ct + 2*eh
                    a(f"ds_read_b64_tr_b16 v[{r}:{r+1}], v{32+ct} offset:{4096*ln + 2048*eh}")
        a("L_s2nw2:")
    c0 = -2 * LOG2E * 0.7978845608028654
    a(f"v_mov_b32 v34, {f2u(c0)}\nv_mov_b32 v35, {f2u(c0*0.044715)}\nv_mov_b32 v36, {f2u(1 + 1e-5)}\nv_mov_b32 v37, {f2u(1e-10)}\nv_mov_b32 v38, {f2u(1/576)}\nv_mov_b32 v39, v38")
    a("v_mov_b32 v33, 0xfffff000\ns_xor_b32 s63, s62, 0x880")
    def gf_store(skip):
        a(f"s_cmp_eq_u32 s57, 0\ns_cbranch_scc0 {skip}\nglobal_store_dwordx2 v26, v[16:17], s[28:29] sc1")
    if gf:
        a(f"s_and_b32 s57, s38, 0x8f\ns_xor_b32 s3, s33, 4\ns_or_b32 s57, s57, s3\ns_lshl3_add_u32 s3, s38, {GF}")
        a("v_and_b32 v26, 15, v0\nv_lshl_add_u32 v26, v26, 3, s3\nv_mov_b32 v16, s62\nv_mov_b32 v17, s63")
    a(f"s_mov_b32 s46, {SPIN}")
    a("L_s2poll:")
    a("s_waitcnt vmcnt(1)\nv_mfma_f32_16x16x32_bf16 v[56:59], v[12:15], v[40:43], v[48:51]")
    a("s_waitcnt vmcnt(0)\nv_mfma_f32_16x16x32_bf16 v[56:59], v[12:15], v[44:47], v[56:59]")
    a("v_cmp_u_f32 vcc, v56, v56")
    a("v_cvt_pk_bf16_f32 v56, v56, v57\nv_cvt_pk_bf16_f32 v57, v58, v59")
    a("s_cbranch_vccnz L_s2chk")
    a("L_s2go:")
    STAMP(11)
    a(f"ds_write_b64 v7, v[56:57] offset:{Y}")
    a("ds_read_b128 v[128:131], v9\nds_read_b128 v[132:135], v9 offset:64")
    if gf == 2: gf_store("L_nogf"); a("L_nogf:")
    a("s_waitcnt lgkmcnt(0)")
    for ct in range(3):
        for u in range(2):
            d = 136 + 4*ct; r = 64 + ct*8 + 4*u if ct < 2 else 128 + 4*u
            a(f"v_mfma_f32_16x16x32_bf16 v[{d}:{d+3}], v[{128+4*u}:{131+4*u}], v[{r}:{r+3}], {'0' if u == 0 else f'v[{d}:{d+3}]'}")
    if gf == 3: gf_store("L_nogf"); a("L_nogf:")
    a("s_cmp_lt_u32 s39, 3")
    a("v_cndmask_b32 v136, v136, v140, s[58:59]\nv_cndmask_b32 v137, v137, v141, s[58:59]")
    a(f"ds_write_b64 v10, v[136:137] offset:{T}\ns_mov_b64 exec, s[60:61]\nds_write_b64 v11, v[144:145] offset:{SS}\ns_mov_b64 exec, -1")
    if fine: STAMP(1)
    a("s_waitcnt lgkmcnt(0)\ns_barrier")
    a("s_cbranch_scc0 L_s2x" if gf == 1 else "s_cbranch_scc0 L_fin")
    if fine: STAMP(2)
    for k in range(4): a(f"ds_read_b128 v[{60+4*k}:{63+4*k}], v20 offset:{SS + 16*k}")
    a(f"ds_read_b64 v[76:77], v20 offset:{SS + 64}")
    for k in range(4): a(f"ds_read_b128 v[{128+4*k}:{131+4*k}], v8 offset:{T + 16*k}")
    a(f"ds_read_b64 v[144:145], v8 offset:{T + 64}")
    for k in range(4):
        a(f"s_waitcnt lgkmcnt({0 if fine else 9-k})"); pkadd(60 + 4*k, 62 + 4*k)
        if k == 1: pkadd(60, 64)
    a(f"s_waitcnt lgkmcnt({0 if fine else 5})")
    pkadd(68, 72); pkadd(60, 76); pkadd(60, 68)
    a("v_pk_mul_f32 v[60:61], v[60:61], v[38:39]\nv_fma_f32 v60, -v61, v61, v60\nv_max_f32 v60, 0, v60")
    a("v_fma_f32 v62, v60, v36, v37\nv_rsq_f32 v62, v62")
    a("s_waitcnt lgkmcnt(0)")
    for k in range(4): pkadd(128 + 4*k, 130 + 4*k)
    pkadd(128, 132); pkadd(136, 140); pkadd(128, 144); pkadd(128, 136)
    a("v_fma_f32 v128, -v61, v129, v128\nv_fma_f32 v128, v62, v128, v21")
    a("v_mul_f32 v129, v128, v128\nv_fma_f32 v129, v129, v35, v34\nv_mul_f32 v129, v128, v129")
    a("v_exp_f32 v129, v129\nv_add_f32 v129, 1.0, v129\nv_rcp_f32 v129, v129\nv_mul_f32 v128, v128, v129")
    a(f"v_mov_b32_dpp v129, v128 row_shl:1 {DPPF}")
    a("v_cvt_pk_bf16_f32 v128, v128, v129")
    for r in (1, 2, 3): a(f"v_mov_b32_dpp v{128+r}, v128 row_shl:{2*r} {DPPF}")
    if fine: STAMP(3)
    def fold(ln):
        b = 80 + 16*ln
        a(f"v_permlane16_swap_b32 v{b+8}, v{b+12}\nv_permlane16_swap_b32 v{b}, v{b+4}\nv_and_or_b32 v{b+1}, v{b+8}, v33, s63\nv_and_or_b32 v{b}, v{b}, v33, s62")
        a(f"global_store_dwordx2 v{28 + ln}, v[{b}:{b+1}], s[28:29] sc1")
    for t in range(12):
        a(f"v_mfma_f32_16x16x32_bf16 v[{80+4*t}:{83+4*t}], v[128:131], v[{80+4*t}:{83+4*t}], 0")
    for ln in range(3): fold(ln)
    STAMP(12)
    a("s_branch L_fin" if stamp else "s_endpgm")
    if gf == 1:
        a("L_s2x:"); gf_store("L_fin"); a("s_branch L_fin")
    a("L_s2chk:")
    for k in range(2):
        r = 40 + 4*k
        a(f"v_max3_u32 v31, v{r}, v{r+1}, v{r+2}\nv_max_u32 v31, v31, v{r+3}\nv_cmp_eq_u32 s[{94+2*k}:{95+2*k}], -1, v31")
    a("s_or_b64 s[44:45], s[94:95], s[96:97]\ns_cbranch_scc0 L_s2go")
    a("L_s2chk2:")
    a("s_sub_u32 s46, s46, 1\ns_cbranch_scc1 L_s2go")
    if s2sleep: a(f"s_sleep {s2sleep}")
    for k in range(2):
        a(f"s_mov_b64 exec, s[{94+2*k}:{95+2*k}]\ns_cbranch_execz L_s2r{k}")
        a(f"global_load_dwordx4 v[{40+4*k}:{43+4*k}], v{24+k}, s[28:29] sc1")
        a(f"L_s2r{k}:")
    a("s_mov_b64 exec, -1\ns_waitcnt vmcnt(0)")
    if tight:
        for k in range(2):
            r = 40 + 4*k
            a(f"v_max3_u32 v31, v{r}, v{r+1}, v{r+2}\nv_max_u32 v31, v31, v{r+3}\nv_cmp_eq_u32 s[{94+2*k}:{95+2*k}], -1, v31")
        a("s_or_b64 s[44:45], s[94:95], s[96:97]\ns_cbranch_scc1 L_s2chk2")
    a("s_branch L_s2poll")

    def red8(b):
        a(f"v_permlane32_swap_b32 v{b}, v{b+2}\nv_permlane32_swap_b32 v{b+1}, v{b+3}")
        pkadd(b, b + 2)
        a(f"v_permlane16_swap_b32 v{b}, v{b+1}\nv_add_f32 v{b}, v{b}, v{b+1}")
        a(f"v_add_f32_dpp v{b}, v{b}, v{b} row_ror:8 {DPPF}")
    a("L_s3s:")
    if stamp: a("s_mov_b32 s35, 0")
    a("s_sub_u32 s38, s38, 144\ns_cmp_ge_u32 s38, 36\ns_cbranch_scc1 L_fin")
    if stamp: a("s_mov_b32 s35, 3")
    a("s_lshr_b32 s3, s38, 2\ns_lshl_b32 s3, s3, 6\ns_and_b32 s44, s38, 1\ns_lshl_b32 s44, s44, 5\ns_add_u32 s3, s3, s44")
    a("v_and_b32 v4, 7, v0\nv_lshl_add_u32 v6, v4, 1, s3\nv_and_b32 v5, 16, v0\nv_add_u32 v6, v5, v6\nv_lshrrev_b32 v5, 5, v0\nv_add_u32 v6, v6, v5")
    a("v_lshlrev_b32 v6, 1, v6")
    a("s_bfe_u32 s3, s38, 0x10001\ns_mul_i32 s3, s3, 1152\nv_add_u32 v7, s3, v6")
    a("global_load_ushort v20, v7, s[4:5]\nglobal_load_ushort v21, v6, s[22:23]")
    a(f"s_lshl_b32 s3, s38, 6\ns_add_u32 s3, s3, {H2}")
    a(f"v_lshrrev_b32 v5, 3, v0\nv_mul_u32_u24 v5, {H2S}, v5\nv_lshl_add_u32 v5, v4, 3, v5\nv_add_u32 v5, s3, v5")
    a(f"s_mov_b32 s46, {SPIN}")
    a("L_s3hpoll:")
    a("global_load_dwordx2 v[28:29], v5, s[28:29] sc1\ns_waitcnt vmcnt(0)")
    a("v_max_u32 v8, v28, v29")
    a("v_cmp_eq_u32 vcc, -1, v8\ns_cbranch_vccz L_s3hgo")
    a(f"s_sleep {hsleep}\ns_sub_u32 s46, s46, 1\ns_cbranch_scc0 L_s3hpoll")
    a("L_s3hgo:")
    STAMP(10)
    a("v_lshlrev_b32 v24, 16, v28\nv_and_b32 v25, 0xffff0000, v28\nv_lshlrev_b32 v26, 16, v29\nv_and_b32 v27, 0xffff0000, v29")
    red8(24)
    a("v_lshlrev_b32 v20, 16, v20\nv_lshlrev_b32 v21, 16, v21\nv_add_f32 v20, v20, v24"); round1(20)
    a("v_add_f32 v20, v20, v21")
    a("s_cmp_eq_u32 s38, 0\ns_cbranch_scc0 L_noep")
    a(f"v_mov_b32 v41, s62\nv_mov_b32 v42, {EP}\ns_mov_b64 exec, 1")
    a("global_store_dword v42, v41, s[28:29] sc1\ns_mov_b64 exec, -1")
    a("L_noep:")
    a("s_and_b32 s62, s62, 0xfff")
    if egate:
        a(f"s_movk_i32 s3, {GF}" if gf else f"s_mul_i32 s3, s38, 18432\ns_add_u32 s3, s3, {H4}")
        a(f"v_lshl_add_u32 v5, v0, 7, s3\ns_mov_b32 s46, {SPIN}\ns_mov_b64 exec, {(1 << egate) - 1}")
        a("L_eg:")
        a("global_load_dwordx2 v[24:25], v5, s[28:29] sc1\ns_waitcnt vmcnt(0)")
        a("v_xor_b32 v25, 0x880, v25\nv_xor_b32 v24, s62, v24\nv_xor_b32 v25, s62, v25\nv_or_b32 v24, v24, v25\nv_lshlrev_b32 v24, 20, v24")
        a("v_cmp_eq_u32 vcc, 0, v24\ns_cbranch_vccnz L_egok\ns_sub_u32 s46, s46, 1\ns_cbranch_scc0 L_eg")
        a("L_egok:\ns_mov_b64 exec, -1")
    a("s_branch L_s3c")
    a("L_s3w:")
    if stamp: a("s_mov_b32 s35, 0")
    a("s_sub_u32 s38, s38, 144\ns_cmp_ge_u32 s38, 36\ns_cbranch_scc1 L_fin")
    if stamp: a("s_mov_b32 s35, 3")
    a("v_mov_b32 v7, 0")
    a("L_s3c:")
    a("s_xor_b32 s63, s62, 0x880")
    a(f"s_mul_i32 s3, s38, 18432\ns_lshl_b32 s44, s33, 11\ns_add_u32 s3, s3, s44\ns_add_u32 s3, s3, {H4}")
    a("v_lshl_add_u32 v1, v0, 4, s3")
    a("v_lshlrev_b32 v2, 2, v0\ns_lshl_b32 s3, s33, 8\nv_add_u32 v3, s3, v2")
    a(f"s_mov_b32 s46, {SPIN}")
    if h4pf == 3:
        a("s_cmp_eq_u32 s33, 0\ns_cbranch_scc1 L_nopf3")
        a(f"s_mul_i32 s3, s38, 18432\ns_sub_u32 s44, s33, 1\ns_mul_i32 s44, s44, 2304\ns_add_u32 s3, s3, s44\ns_add_u32 s3, s3, {H4}")
        a(f"v_min_u32 v4, 17, v0\nv_lshl_add_u32 v4, v4, 7, s3\nglobal_load_dword v19, v4, s[28:29]\ns_waitcnt vmcnt(0)\nglobal_load_dword v19, v4, s[28:29] sc1 nt")
        a("L_nopf3:")
    a("s_barrier")
    if s3d: a(f"s_sleep {s3d}")
    h4l = [f"global_load_dwordx4 v[{24+4*k}:{27+4*k}], v1, s[28:29] offset:{1024*k} sc1" for k in range(2)]
    if p3f: a(h4l[0]); a(h4l[1]); a("s_waitcnt vmcnt(0)\ns_branch L_h4c")
    ppoll("h4", [24, 28], h4l, p3, p3s, 8, tagged=32, init=not p3f)
    pkadd(32, 36); pkadd(34, 38)
    red8(32)
    a("L_s3go:")
    a(f"ds_write_b32 v3, v32 offset:{FIN}")
    a("s_cmp_eq_u32 s33, 0\ns_waitcnt lgkmcnt(0)\ns_barrier")
    a("s_cbranch_scc0 L_fin")
    for k in range(4): a(f"ds_read2st64_b32 v[{40+2*k}:{41+2*k}], v2 offset0:{FIN//256 + 2*k} offset1:{FIN//256 + 2*k + 1}")
    a(f"ds_read_b32 v48, v2 offset:{FIN + 2048}")
    STAMP(11)
    a("s_mov_b32 exec_lo, 0x00ff00ff\ns_mov_b32 exec_hi, 0x00ff00ff")
    a("s_waitcnt lgkmcnt(0)")
    pkadd(40, 42); pkadd(44, 46); a("v_add_f32 v48, v48, v20"); pkadd(40, 44)
    a("v_add_f32 v40, v40, v41\nv_add_f32 v40, v40, v48\nv_cvt_pk_bf16_f32 v40, v40, v40")
    a(f"global_store_short v7, v40, s[24:25] {outf}")
    a("L_fin:")
    if stamp:
        if isinstance(swave, str): a(f"s_cmp_eq_u32 s35, 2\ns_cselect_b32 s3, {swave[4:] or 1}, 0\ns_cmp_eq_u32 s33, s3\ns_cbranch_scc0 L_exit2")
        else: a(f"s_cmp_eq_u32 s33, {swave}\ns_cbranch_scc0 L_exit2")
        a("s_memrealtime s[90:91]\ns_waitcnt vmcnt(0)\ns_memrealtime s[92:93]")
        a("s_mov_b64 exec, 1\ns_waitcnt lgkmcnt(0)")
        a(f"s_lshl_b32 s3, s2, 7\ns_add_u32 s3, s3, {STAMP_OFF}\nv_mov_b32 v1, s3")
        a("v_mov_b32 v2, s35\nv_mov_b32 v3, s38\nglobal_store_dwordx2 v1, v[2:3], s[28:29] offset:120")
        for i in range(15):
            a(f"v_mov_b32 v2, s{64+2*i}\nv_mov_b32 v3, s{65+2*i}\nglobal_store_dwordx2 v1, v[2:3], s[28:29] offset:{8*i}")
    a("L_exit2:\ns_endpgm")
    if stamp:
        for key, lo in (("s_load_dword s62, s[28:29], 0", 1), ("s_add_u32 s8, s8, s3", 2)):
            i = L.index(key)
            L[i:i] = [f"s_mov_b64 s[{64+2*k}:{65+2*k}], 0" for k in range(lo, 15)]
    body = hazard.run(L)
    tab = []
    for p in table:
        start = 0
        for (role, ridx, n) in p:
            assert NMAX - NSKIP <= n <= NMAX
            start += n
            tab.append(start | (n << 8) | (role << 16) | (ridx << 24))
        assert start == 128, start
    out = f"""; Fused decode block: pre-LN -> q projection -> sliding-window GQA attention -> wo -> residual -> LN,LN -> MLP -> residual.
; One persistent launch, 256 workgroups x 9 waves (generated by a Python script from hand-written sequences).
; @launch grid=(256,1,1) block=(576,1,1) lds={LDS_SIZE}
.amdgcn_target "amdgcn-amd-amdhsa--gfx950"
.text
.globl {NAME}_kernel
.type L_front,@object
L_front:
.fill 768, 4, 0
.p2align 8
.type {NAME}_kernel,@function
{NAME}_kernel:
""" + "\n".join(body) + f"""
.p2align 7
.type L_table,@object
L_table:
""" + "\n".join(f".long {t:#x}" for t in tab) + f"""
.p2align 8
L_codeend:
.section .rodata,"a"
.p2align 6
.amdhsa_kernel {NAME}_kernel
  .amdhsa_next_free_vgpr 168
  .amdhsa_next_free_sgpr 102
  .amdhsa_accum_offset 168
  .amdhsa_group_segment_fixed_size 0
  .amdhsa_kernarg_size 104
  .amdhsa_user_sgpr_count 2
  .amdhsa_user_sgpr_kernarg_segment_ptr 1
  .amdhsa_system_sgpr_workgroup_id_x 1
  .amdhsa_float_denorm_mode_32 3
.end_amdhsa_kernel
"""
    return out
def gen(**kw):
    import subprocess, re
    lines = 100
    for _ in range(3):
        txt = gen1(lines, **kw)
        open("_g.s", "w").write(txt)
        subprocess.run(["clang", "-x", "assembler", "-target", "amdgcn-amd-amdhsa", "-mcpu=gfx950", "-c", "_g.s", "-o", "_g.o"], check=True)
        sym = subprocess.run(["llvm-objdump", "-t", "_g.o"], capture_output=True, text=True).stdout
        at = lambda n: int(re.search(r"^([0-9a-f]+) .*" + n + "$", sym, re.M).group(1), 16)
        end = at("L_codeend") - at("_kernel")
        assert at("L_end256") - at("_kernel") <= 256
        if end // 128 == lines: return txt
        lines = end // 128
    raise RuntimeError("size did not converge")
if __name__ == "__main__":
    open("k.s", "w").write(gen())
    open("ks.s", "w").write(gen(stamp=True))
```

```python
import sys, struct
import hazard
NAME = "sequential_preLN__sliding_block_cached__mixer_channel_mlp__decode"
def f2u(x): return struct.unpack("<I", struct.pack("<f", x))[0]

EP, FL, H2, H1, H4, QP = 0x0, 0x1000, 0x4000, 0x10000, 0x30000, 0xe0000
GF = 0x2000
H2S = 3072
ST = H2 + 2304
TAGMUL, TAGADD = 0x9E3779B1, 0x7F4A7C15
STAMP_OFF = 512 << 20
ROLE, LV, QM, XR = 3600, 2976, 3008, 20480
XN, Q, STATW, CNT, CF, ONES, SS, DUMP, Y, T, FIN, OP, RED, WQ, W = (
    0, 2304, 2816, 2944, 3072, 3200, 3328, 3584, 3840, 6144, 6144, 12288, 20480, 24576, 45056)
LDS_SIZE = W + 73728
NMAX = 18
KR, VR = 24, 96
LOG2E = 1.4426950408889634
SPIN = 1 << 15

def mk_table(a=(13, 13), b=(17,)*6, last=(13, 14, 14, 17, 17, 17, 18, 18)):
    t = []; k = 0
    for q in range(3):
        row = [(1, 2*q, a[0]), (1, 2*q+1, a[1])]
        for n in b: row.append((0, k & 1, n)); k += 1
        t.append(row)
    row = [(1, 6+i, last[i]) for i in range(3)]
    for n in last[3:]: row.append((0, k & 1, n)); k += 1
    t.append(row)
    return t
DEFAULT_TABLE = mk_table(last=(13, 13, 13, 18, 18, 18, 18, 17))

def gen1(code_lines, D=5, J=9, EARLY2=0, stamp=False, table=DEFAULT_TABLE, local=True, swave=0, fine=False, noround=False, stagger=True, fine2=False, s2sleep=0, s1sleep=0, w1a='', kvf='nt', masked=True, tick_lv=False, lvpos=0, p3=1, p3s=0, p2=0, p2s=0, p1=0, ntr=(30, 50, 66), ntrs=4, lvall=True, pollearly=False, latebe=False, trth=40, wb=0, wbs=16, outf='', s3d=0, gate=None, hsleep=2, egate=8, dpat=(0,), xpat=(1,), NSKIP=5, pw2=False, ra=3, rb=5, wx=0, h4pf=2, h4f='', qmark=0, b5early=True, gf=1, loct=2, p3f=True, tlb=0):
    L = []
    def a(s):
        for x in s.split("\n"):
            x = x.strip()
            if x: L.append(x)
    def STAMP(i):
        if stamp: a(f"s_memrealtime s[{64+2*i}:{65+2*i}]")
    DPPF = "row_mask:0xf bank_mask:0xf"
    def row_sum(r, op="v_add_f32"):
        for k in (8, 4, 2, 1): a(f"{op}_dpp v{r}, v{r}, v{r} row_ror:{k} {DPPF}")
    def oct_red(r, op):
        a(f"{op}_dpp v{r}, v{r}, v{r} quad_perm:[1,0,3,2] {DPPF}")
        a(f"{op}_dpp v{r}, v{r}, v{r} quad_perm:[2,3,0,1] {DPPF}")
        a(f"{op}_dpp v{r}, v{r}, v{r} row_half_mirror {DPPF}")
    def round2(x, y, tmp):
        a(f"v_cvt_pk_bf16_f32 v{tmp}, v{x}, v{y}")
        a(f"v_lshlrev_b32 v{x}, 16, v{tmp}")
        a(f"v_and_b32 v{y}, 0xffff0000, v{tmp}")
    def round1(x):
        a(f"v_cvt_pk_bf16_f32 v{x}, v{x}, v{x}")
        a(f"v_lshlrev_b32 v{x}, 16, v{x}")
    def pkadd(x, y, d=None):
        d = x if d is None else d
        a(f"v_pk_add_f32 v[{d}:{d+1}], v[{x}:{x+1}], v[{y}:{y+1}]")
    def srd(base, nbytes, dst=40):
        a(f"s_mov_b32 s{dst}, s{base}\ns_mov_b32 s{dst+1}, s{base+1}\ns_mov_b32 s{dst+2}, {nbytes}\ns_mov_b32 s{dst+3}, 0x20000")
    def sel_masks(lane, dst, tmp):
        a(f"v_and_b32 v{tmp}, 1, v{lane}")
        a(f"v_lshlrev_b32 v{tmp}, 4, v{tmp}")
        a(f"s_mov_b32 s47, 0xffff\nv_lshlrev_b32 v{tmp}, v{tmp}, s47")
        a(f"v_bfe_u32 v{tmp+1}, v{lane}, 1, 2")
        for k in range(4):
            a(f"v_cmp_eq_u32 vcc, {k}, v{tmp+1}")
            a(f"v_cndmask_b32 v{dst+k}, 0, v{tmp}, vcc")
    def tr_addr128(lane, dst, tmp, base_s, perm=(0, 2, 1, 3)):
        a(f"v_lshrrev_b32 v{tmp}, 2, v{lane}")
        a(f"v_bfe_u32 v{tmp+1}, v{lane}, 3, 2")
        a(f"v_lshl_add_u32 v{tmp}, v{tmp}, 7, s{base_s}")
        a(f"v_lshl_add_u32 v{tmp}, v{tmp+1}, 5, v{tmp}")
        a(f"v_and_b32 v{tmp+1}, 3, v{lane}")
        a(f"v_lshl_add_u32 v{dst}, v{tmp+1}, 3, v{tmp}")
        for ct in (1, 2, 3): a(f"v_xor_b32 v{dst+ct}, {perm[ct]*32}, v{dst}")
    def dma_chunk128(lane, dst, tmp):
        a(f"v_lshrrev_b32 v{tmp}, 3, v{lane}")
        a(f"v_and_b32 v{dst}, 6, v{tmp}")
        a(f"v_xor_b32 v{dst}, v{dst}, v{lane}")
        a(f"v_and_b32 v{dst}, 7, v{dst}")
        a(f"v_lshlrev_b32 v{dst}, 4, v{dst}")
    def w1_voff(lane, dst, tmp):
        a(f"v_lshrrev_b32 v{dst}, 3, v{lane}")
        a(f"v_and_b32 v{tmp+1}, 2, v{dst}")
        a(f"v_bfe_u32 v{tmp}, v{lane}, 2, 1")
        a(f"v_lshl_add_u32 v{dst}, v{tmp}, 4, v{dst}")
        a(f"v_mul_u32_u24 v{dst}, 9216, v{dst}")
        a(f"v_xor_b32 v{tmp}, v{tmp+1}, v{lane}")
        a(f"v_and_b32 v{tmp}, 3, v{tmp}")
        a(f"v_lshl_add_u32 v{dst}, v{tmp}, 4, v{dst}")
    def w2_voff(lane, dst, tmp):
        dma_chunk128(lane, dst, tmp)
        a(f"v_mul_u32_u24 v{tmp}, 1152, v{tmp}")
        a(f"v_add_u32 v{dst}, v{dst}, v{tmp}")
    def s2_dma(k, v1off, v2off):
        if k < 4:
            if k == 2: a(f"s_xor_b32 s51, s51, 2048\ns_add_u32 s48, s48, s56")
            a(f"s_add_u32 m0, s51, {(k & 1)*1024}\ns_add_u32 s45, s48, {(k & 1)*8*9216}")
            a(f"buffer_load_dwordx4 v{v1off}, s[40:43], s45 offen {w1a if k < 2 else 'nt'} lds")
        else:
            a(f"s_add_u32 m0, s50, {36864 + (k-4)*1024}")
            a(f"s_add_u32 s45, s49, {(k-4)*8*1152}")
            a(f"buffer_load_dwordx4 v{v2off}, s[52:55], s45 offen nt lds")
    def s2_setup():
        a(f"s_mul_i32 s48, s33, {64*9216}\ns_lshl_b32 s45, s38, 6\ns_add_u32 s48, s48, s45\ns_add_u32 s18, s18, s45\ns_addc_u32 s19, s19, 0")
        a(f"s_mul_i32 s49, s38, {32*1152}\ns_lshl_b32 s45, s33, 7\ns_add_u32 s49, s49, s45")
        a(f"s_bitcmp1_b32 s38, 0\ns_cselect_b32 s44, {32*9216}, 0\ns_cselect_b32 s51, 2048, 0\ns_add_u32 s48, s48, s44\ns_add_u32 s51, s51, s50")
        a(f"s_lshl_b32 s44, s44, 1\ns_sub_u32 s56, {32*9216}, s44")
    def s2_pre(t0):
        srd(16, 576*4608*2, 40); srd(20, 4608*576*2, 52)
        a(f"s_lshl_b32 s50, s33, 12\ns_add_u32 s50, s50, {W}")
        w1_voff(0, 6, t0); w2_voff(0, 7, t0)
        a(f"v_bfe_u32 v{t0}, v0, 2, 1\nv_and_b32 v21, 3, v0\nv_lshl_add_u32 v21, v{t0}, 4, v21\nv_lshrrev_b32 v{t0}, 4, v0\nv_lshl_add_u32 v21, v{t0}, 2, v21\nv_lshlrev_b32 v21, 1, v21")

    def ppoll(name, regs, loads, depth, slp, tmp, init=True, tagged=None):
        if init:
            for r in regs:
                for k in range(4): a(f"v_mov_b32 v{r+k}, -1")
            for k in range(len(regs)): a(f"s_mov_b64 s[{94+2*k}:{95+2*k}], -1")
        a(f"L_{name}p:")
        for k, r in enumerate(regs):
            a(f"s_mov_b64 exec, s[{94+2*k}:{95+2*k}]\ns_cbranch_execz L_{name}n{k}")
            a(loads[k])
            a(f"L_{name}n{k}:")
        a("s_mov_b64 exec, -1")
        if slp: a(f"s_sleep {slp}")
        a(f"s_waitcnt vmcnt({len(regs)*(depth-1)})")
        a(f"s_sub_u32 s46, s46, 1\ns_cbranch_scc1 L_{name}t")
        a(f"L_{name}c:")
        if tagged:
            for k, r in enumerate(regs):
                y = tagged + 4*k
                for j in range(4): a(f"v_xor_b32 v{y+j}, s{62 + (j & 1)}, v{r+j}")
                a(f"v_or3_b32 v{tmp+k}, v{y}, v{y+1}, v{y+2}\nv_or_b32 v{tmp+k}, v{tmp+k}, v{y+3}\nv_lshlrev_b32 v{tmp+k}, 20, v{tmp+k}")
                a(f"v_cmp_ne_u32 s[{94+2*k}:{95+2*k}], 0, v{tmp+k}")
        else:
            for k, r in enumerate(regs):
                a(f"v_max3_u32 v{tmp+k}, v{r}, v{r+1}, v{r+2}")
            for k, r in enumerate(regs):
                a(f"v_max_u32 v{tmp+k}, v{tmp+k}, v{r+3}")
            for k, r in enumerate(regs):
                a(f"v_cmp_eq_u32 s[{94+2*k}:{95+2*k}], -1, v{tmp+k}")
        a("s_or_b64 s[44:45], s[94:95], s[96:97]")
        for k in range(2, len(regs)): a(f"s_or_b64 s[44:45], s[44:45], s[{94+2*k}:{95+2*k}]")
        a(f"s_cbranch_scc1 L_{name}p")
        a(f"L_{name}t:")

    ends = []
    for p in table:
        e = 0; w = 0
        for i, (_, _, n) in enumerate(p):
            e += n; w |= e << (8 * i)
        ends.append(w)
    assert ends[0] == ends[1] == ends[2]
    a("s_load_dwordx16 s[4:19], s[0:1], 0")
    STAMP(0)
    a("v_readfirstlane_b32 s33, v0")
    a("s_cmpk_ge_u32 s2, 0x100\ns_cbranch_scc1 L_exit")
    a("s_getpc_b64 s[48:49]\nL_pc:")
    a("s_lshr_b32 s32, s2, 3")
    a("s_cmp_eq_u32 s33, 0\ns_cbranch_scc1 L_svc0")
    a(f"s_and_b32 s3, s32, 1\ns_mulk_i32 s3, {code_lines*64}\ns_addk_i32 s3, -8192")
    a(f"v_min_u32 v1, {64 + code_lines//2-1}, v0\nv_lshl_add_u32 v1, v1, 7, s3")
    a("global_load_dword v7, v1, s[48:49]")
    a("v_and_b32 v0, 63, v0")
    dma_chunk128(0, 3, 4)
    a("v_lshl_add_u32 v3, v4, 13, v3")
    a(f"s_lshl4_add_u32 m0, s33, {WQ - 1024}")
    a("s_and_b32 s31, s2, 7\ns_lshr_b32 s37, s32, 4\ns_lshl1_add_u32 s37, s31, s37")
    a("s_bfe_u32 s44, s32, 0x20002\ns_mulk_i32 s44, 1152\ns_add_u32 s44, s44, s33\ns_addk_i32 s44, -64")
    a("s_and_b32 s45, s32, 3\ns_lshl2_add_u32 s45, s37, s45\ns_lshl3_add_u32 s44, s44, s45\ns_lshl_b32 s44, s44, 7")
    a("v_add_u32 v3, s44, v3\ns_mov_b32 s44, 0x80000\nv_add_u32 v4, s44, v3\nv_add_u32 v5, s44, v4")
    a("s_waitcnt lgkmcnt(0)")
    STAMP(1)
    a("global_load_lds_dwordx4 v3, s[10:11] nt")
    a("s_addk_i32 m0, 0x2000\ns_cmpk_lt_u32 s33, 192")
    a("global_load_lds_dwordx4 v4, s[10:11] nt")
    a("s_cbranch_scc0 L_wq2")
    a("s_addk_i32 m0, 0x2000")
    a("global_load_lds_dwordx4 v5, s[10:11] nt")
    a("s_branch L_wq2")
    a("L_end256:")
    a(".p2align 8")
    a("L_svc0:")
    a("s_setprio 3")
    a("v_mul_u32_u24 v2, 36, v0")
    a("s_waitcnt lgkmcnt(0)")
    a("global_load_dwordx4 v[10:13], v2, s[4:5]\nglobal_load_dwordx4 v[14:17], v2, s[4:5] offset:16\nglobal_load_dword v18, v2, s[4:5] offset:32")
    if tlb:
        a("s_and_b32 s31, s2, 7\ns_lshr_b32 s37, s32, 4\ns_lshl1_add_u32 s37, s31, s37")
        a("s_and_b32 s3, s32, 8\ns_lshl1_add_u32 s3, s3, s37\ns_lshl3_add_u32 s3, s3, 7\ns_lshl_b32 s3, s3, 20\nv_mov_b32 v19, s3")
        a("global_load_dword v19, v19, s[8:9] nt")
    if tlb > 1:
        a("v_min_u32 v41, 2, v0\nv_lshlrev_b32 v41, 21, v41")
        a("global_load_dword v38, v41, s[12:13] nt\nglobal_load_dword v39, v41, s[16:17] nt")
    a("v_lshlrev_b32 v40, 2, v0\nv_mov_b32 v56, -1\nv_mov_b32 v57, -1\nv_mov_b32 v3, 0\nv_mov_b32 v4, 0x3f803f80")
    a(f"ds_write2st64_b32 v40, v56, v57 offset0:{Q//256} offset1:{Q//256+1}")
    a(f"ds_write2st64_b32 v40, v3, v4 offset0:{STATW//256} offset1:{CF//256}")
    a("s_waitcnt lgkmcnt(0)")
    a("s_load_dwordx8 s[20:27], s[0:1], 64\ns_load_dwordx2 s[28:29], s[0:1], 96")
    a("s_barrier")
    a("s_branch L_service")

    a("L_wq2:")
    a(f"s_mov_b32 s44, {ends[0] & 0xffffffff:#x}\ns_mov_b32 s45, {ends[0] >> 32:#x}\ns_cmp_ge_u32 s32, 24")
    a(f"s_cselect_b32 s44, {ends[3] & 0xffffffff:#x}, s44\ns_cselect_b32 s45, {ends[3] >> 32:#x}, s45")
    a("s_lshl_b32 s46, s32, 3\ns_lshr_b64 s[44:45], s[44:45], s46")
    if ra: a(f"s_mul_i32 s45, s31, {ra}\ns_add_u32 s44, s44, s45")
    if rb: a(f"s_lshr_b32 s45, s32, 3\ns_mul_i32 s45, s45, {rb}\ns_add_u32 s44, s44, s45")
    a(f"s_add_u32 s44, s44, {128 + NSKIP - NMAX}\ns_and_b32 s44, s44, 127\ns_lshl_b32 s44, s44, 13")
    a("s_lshl4_add_u32 s46, s33, -1024")
    if wx: a(f"s_and_b32 s45, s32, {wx}\ns_lshl_b32 s45, s45, 10\ns_xor_b32 s46, s46, s45")
    a("s_add_u32 s46, s46, s44")
    a("v_bfe_u32 v5, v0, 2, 2\nv_lshrrev_b32 v4, 4, v0\nv_and_b32 v1, 3, v0")
    a("v_lshl_add_u32 v1, v1, 4, s46\nv_lshl_add_u32 v1, v4, 6, v1\nv_lshl_add_u32 v1, v5, 8, v1")
    a("s_and_b32 s3, s32, 8\ns_lshl1_add_u32 s3, s3, s37\ns_lshl3_add_u32 s3, s3, 7\ns_lshl_b32 s3, s3, 20")
    a("s_add_u32 s6, s6, s3\ns_addc_u32 s7, s7, 0\ns_mov_b32 s57, 0xfffff")
    if not latebe: a("s_barrier")
    issued = [1]
    def throttle():
        if issued[0] >= D:
            a(f"s_waitcnt vmcnt({D-1-dpat[issued[0] % len(dpat)]})")
            if xpat and issued[0] > D and xpat[issued[0] % len(xpat)]:
                a(f"s_cmp_eq_u32 s63, 0\ns_cbranch_scc0 L_x{issued[0]}\ns_waitcnt vmcnt({D-1-xpat[issued[0] % len(xpat)]})\nL_x{issued[0]}:")
        issued[0] += 1
    def load_unit(kind, t):
        base, areg, sb = (KR, 1, "s[6:7]") if kind == "K" else (VR, 2, "s[8:9]")
        if t < NSKIP: a(f"s_cmp_ge_u32 s34, {NMAX-t}\ns_cbranch_scc0 L_skip{kind}{t}")
        throttle()
        a(f"global_load_dwordx4 v[{base+4*t}:{base+4*t+3}], v{areg}, {sb} {kvf}")
        if t < NSKIP: a(f"L_skip{kind}{t}:")
        if kind == "K" and t == NMAX - 1: a(f"v_subrev_u32 v1, {(NMAX-1)*8192}, v1\nv_and_b32 v1, s57, v1")
        elif t != (NMAX - 1 if kind == "V" else NSKIP - 1): a(f"v_add_u32 v{areg}, 0x2000, v{areg}\nv_and_b32 v{areg}, s57, v{areg}")
    for t in list(range(NSKIP, NMAX)) + list(range(NSKIP)):
        load_unit("K", t)
        if t == NSKIP + D - 2:
            if latebe: a("s_barrier")
            a("s_lshl2_add_u32 s47, s32, L_table-L_pc")
            a("s_load_dword s30, s[48:49], s47\ns_load_dwordx8 s[20:27], s[0:1], 64\ns_load_dwordx2 s[28:29], s[0:1], 96")
            a("s_lshr_b32 s33, s33, 6\ns_sub_u32 s39, s33, 1")
            a(f"s_sub_u32 s46, s46, {NSKIP*8192}\ns_and_b32 s46, s46, s57\nv_lshl_add_u32 v2, v0, 4, s46")
            a("s_add_u32 s8, s8, s3\ns_addc_u32 s9, s9, 0")
            for tt in range(NSKIP):
                for k in range(4): a(f"v_mov_b32 v{KR+4*tt+k}, 0\nv_mov_b32 v{VR+4*tt+k}, 0")
            sel_masks(0, 12, 3)
            a("v_bfe_u32 v3, v0, 3, 1\nv_lshrrev_b32 v4, 4, v0\nv_and_b32 v20, 3, v0")
            a("v_lshlrev_b32 v20, 4, v20\nv_lshl_add_u32 v20, v4, 6, v20\nv_lshl_add_u32 v20, v3, 8, v20")
            for k in range(4): a(f"v_mov_b32 v{16+k}, 0")
            if xpat: a("s_getreg_b32 s63, hwreg(HW_REG_XCC_ID)\ns_and_b32 s63, s63, 1")
            a("s_lshl_b32 s3, s39, 2\nv_mov_b32 v3, s3\nv_mov_b32 v4, 1")
            a("s_waitcnt lgkmcnt(0)")
            a("s_bfe_u32 s34, s30, 0x50008\ns_bfe_u32 s35, s30, 0x20010\ns_bfe_u32 s36, s30, 0x50018")
        if t == NSKIP + D - 1:
            STAMP(2)
            a(f"ds_write_b32 v3, v4 offset:{CNT}")
        if t == 17: STAMP(3)
        if qmark and t == qmark: a(f"ds_write_b32 v3, v4 offset:{QM}")
    a("s_cmp_eq_u32 s35, 1\ns_cbranch_scc0 L_nowo")
    srd(12, 4096*576*2)
    dma_chunk128(0, 3, 4)
    a("v_and_b32 v4, 3, v4\nv_lshrrev_b32 v5, 5, v0\nv_lshl_add_u32 v4, v5, 4, v4")
    a("v_mul_u32_u24 v4, 1152, v4\nv_add_u32 v3, v3, v4")
    a("s_lshl_b32 s44, s31, 9\ns_lshr_b32 s45, s39, 1\ns_lshl_b32 s45, s45, 7\ns_add_u32 s44, s44, s45")
    a("s_and_b32 s45, s39, 1\ns_lshl_b32 s45, s45, 2\ns_add_u32 s44, s44, s45")
    a("s_mul_i32 s44, s44, 1152\ns_lshl_b32 s45, s36, 7\ns_add_u32 s44, s44, s45")
    a(f"s_lshl_b32 s47, s39, 13\ns_add_u32 s47, s47, {W}")
    for k in range(8):
        u, eh, gh = k >> 2, (k >> 1) & 1, k & 1
        a(f"s_add_u32 s45, s44, {(64*u + 32*gh + 8*eh)*1152}")
        a(f"s_add_u32 m0, s47, {k*1024}")
        a(f"s_waitcnt vmcnt({D-1})")
        a("buffer_load_dwordx4 v3, s[40:43], s45 offen nt lds")
    a("L_nowo:")
    ORDER = [0, 1, 4, 5, 6, 7, 2, 3] if stagger else list(range(8))
    s2_pre(3)
    a("s_lshl_b32 s3, s39, 2\nv_mov_b32 v1, s3")
    assert J >= NSKIP + D - 1
    for t in range(J): load_unit("V", t)
    nextv = [J]
    def more_v():
        if nextv[0] < NMAX: load_unit("V", nextv[0]); nextv[0] += 1
    for t in range(NSKIP):
        a(f"s_cmp_ge_u32 s34, {NMAX-t}\ns_cselect_b32 s{94+t}, 0, 0xff800000")
    a(f"s_mov_b32 s61, {f2u(128**-0.5)}\ns_mov_b32 s62, {f2u(LOG2E)}\ns_mov_b32 s46, {SPIN*8}")
    more_v()
    STAMP(4)
    a("L_qw:")
    a(f"ds_read_b128 v[8:11], v20 offset:{Q}\ns_waitcnt lgkmcnt(0)")
    a("v_max3_u32 v3, v8, v9, v10\nv_max_u32 v3, v3, v11\nv_cmp_eq_u32 vcc, -1, v3\ns_cbranch_vccz L_qok")
    a("s_sleep 1\ns_sub_u32 s46, s46, 1\ns_cbranch_scc0 L_qw")
    a("L_qok:")
    STAMP(5)
    k_ = lambda t, r=0: KR + 4*t + r
    def diag(t):
        a(f"v_mov_b32_dpp v{k_(t)}, v{k_(t)} quad_perm:[0,0,0,0] {DPPF}")
        for r in (1, 2, 3): a(f"v_add_f32_dpp v{k_(t)}, v{k_(t,r)}, v{k_(t)} quad_perm:[{r},{r},{r},{r}] {DPPF}")
    LAG = 3
    for t in range(NMAX + LAG):
        if t < NMAX: a(f"v_mfma_f32_16x16x32_bf16 v[{k_(t)}:{k_(t,3)}], v[{k_(t)}:{k_(t,3)}], v[8:11], 0")
        if t >= LAG: diag(t - LAG)
    more_v()
    for t in range(0, NMAX, 2):
        if not noround: round2(k_(t), k_(t+1), 3)
        a(f"v_mul_f32 v{k_(t)}, s61, v{k_(t)}\nv_mul_f32 v{k_(t+1)}, s61, v{k_(t+1)}")
        if not noround: round2(k_(t), k_(t+1), 3)
    for t in range(NSKIP): a(f"v_add_f32 v{k_(t)}, s{94+t}, v{k_(t)}")
    a(f"v_max_f32 v4, v{k_(0)}, v{k_(1)}")
    for t in range(2, NMAX, 2): a(f"v_max3_f32 v4, v{k_(t)}, v{k_(t+1)}, v4")
    more_v()
    for sw in (16, 32):
        a(f"v_mov_b32 v3, v4\nv_permlane{sw}_swap_b32 v4, v3\nv_max_f32 v4, v4, v3")
    a("v_mul_f32 v4, s62, v4")
    a("v_mov_b32 v5, 0")
    for t in range(NMAX):
        a(f"v_fma_f32 v{k_(t)}, v{k_(t)}, s62, -v4")
    for t in range(NMAX):
        a(f"v_exp_f32 v{k_(t)}, v{k_(t)}")
    for t in range(NMAX):
        a(f"v_add_f32 v5, v5, v{k_(t)}")
        a(f"v_cvt_pk_bf16_f32 v{k_(t)}, v{k_(t)}, v{k_(t)}")
    for sw in (16, 32):
        a(f"v_mov_b32 v3, v5\nv_permlane{sw}_swap_b32 v5, v3\nv_add_f32 v5, v5, v3")
    a("v_bfe_u32 v3, v0, 3, 1\ns_lshl_b32 s3, s39, 3\nv_lshl_add_u32 v3, v3, 6, s3")
    a(f"ds_write_b64 v3, v[4:5] offset:{STATW}")
    STAMP(6)
    more_v()
    for t in range(NMAX):
        for r in (3, 2, 1, 0): a(f"v_and_b32 v{k_(t,r)}, v{12+r}, v{k_(t)}")
    a("s_lshl_b32 s3, s39, 10\nv_lshl_add_u32 v3, v0, 4, s3")
    def pv(t): a(f"v_mfma_f32_16x16x32_bf16 v[16:19], v[{k_(t)}:{k_(t,3)}], v[{VR+4*t}:{VR+4*t+3}], v[16:19]")
    done = 0
    while nextv[0] < NMAX:
        n = nextv[0]; more_v()
        if n == NMAX - 1 - lvpos: a(f"ds_write_b32 v1, v5 offset:{LV}")
        while done <= n - D: pv(done); done += 1
    while done < NMAX:
        a(f"s_waitcnt vmcnt({min(NMAX-1-done, D-1)})")
        hi = max(done, NMAX - D)
        while done <= hi: pv(done); done += 1
    STAMP(7)
    a(f"ds_write_b128 v3, v[16:19] offset:{OP}")
    a("s_waitcnt lgkmcnt(0)\ns_barrier")
    STAMP(8)
    a("s_cmp_eq_u32 s35, 1\ns_cbranch_scc0 L_dyn")
    a(f"s_lshl3_add_u32 s3, s31, s39\ns_lshl_b32 s3, s3, 11\ns_add_u32 s3, s3, {H1}")
    a("v_lshl_add_u32 v2, v0, 4, s3")
    a(f"s_lshr_b32 s3, s39, 1\ns_lshl_b32 s3, s3, 6\ns_mul_i32 s44, s31, {H2S}\ns_add_u32 s3, s3, s44\ns_add_u32 s3, s3, {ST}")
    a("v_and_b32 v1, 48, v0\nv_add_u32 v1, s3, v1")
    a("global_load_dwordx4 v[20:23], v1, s[28:29] sc1")
    a("global_load_dwordx4 v[24:27], v2, s[28:29] sc1\nglobal_load_dwordx4 v[28:31], v2, s[28:29] offset:1024 sc1")
    tr_addr128(0, 4, 16, 47)
    for u in range(2):
        for ct in range(4):
            for eh in range(2):
                r = 64 + (u*4 + ct)*4 + 2*eh
                a(f"ds_read_b64_tr_b16 v[{r}:{r+1}], v{4+ct} offset:{(32*u + 16*eh)*128}")
    a("s_lshl_b32 s3, s39, 9\nv_lshl_add_u32 v3, v0, 3, s3")
    a(f"s_mov_b32 s46, {SPIN}\ns_waitcnt vmcnt(2)")
    a("L_fw:")
    a("v_max3_u32 v8, v20, v21, v22\nv_max_u32 v8, v8, v23\nv_cmp_eq_u32 vcc, -1, v8\ns_cbranch_vccnz L_fretry")
    a("L_fok:")
    a("v_max3_f32 v8, v20, v21, v22\nv_max_f32 v8, v8, v23\nv_mov_b32 v9, v8\nv_permlane16_swap_b32 v8, v9\nv_max_f32 v8, v8, v9")
    for r in range(4): a(f"v_sub_f32 v{20+r}, v{20+r}, v8")
    for r in range(4): a(f"v_exp_f32 v{20+r}, v{20+r}")
    a("v_add_f32 v8, v20, v21\nv_add_f32 v9, v22, v23\nv_add_f32 v8, v8, v9\nv_mov_b32 v9, v8\nv_permlane16_swap_b32 v8, v9\nv_add_f32 v8, v8, v9")
    a("v_rcp_f32 v8, v8")
    for r in range(4): a(f"v_mul_f32 v{20+r}, v8, v{20+r}")
    a(f"s_mov_b32 s46, {SPIN}\ns_waitcnt lgkmcnt(0)")
    STAMP(9)
    a("L_s1poll:")
    if p1:
        a("s_waitcnt vmcnt(0)\ns_branch L_h1c")
        ppoll("h1", [24, 28], [f"global_load_dwordx4 v[{24+4*k}:{27+4*k}], v2, s[28:29] offset:{1024*k} sc1" for k in range(2)], p1, 0, 8, init=False)
    else:
        a("s_waitcnt vmcnt(0)")
        a("v_max3_u32 v8, v24, v25, v26\nv_max3_u32 v9, v27, v28, v29\nv_max3_u32 v8, v30, v31, v8\nv_max_u32 v8, v8, v9")
        a("v_cmp_eq_u32 vcc, -1, v8\ns_cbranch_vccnz L_s1retry")
    a("L_s1go:")
    STAMP(10)
    for ct in range(4):
        for u in range(2):
            r = 64 + (u*4 + ct)*4; d = 32 + 4*ct
            a(f"v_mfma_f32_16x16x32_bf16 v[{d}:{d+3}], v[{24+4*u}:{27+4*u}], v[{r}:{r+3}], {'0' if u == 0 else f'v[{d}:{d+3}]'}")
    def scale(ct):
        d = 32 + 4*ct
        a(f"v_pk_mul_f32 v[{d}:{d+1}], v[{d}:{d+1}], v[20:21]\nv_pk_fma_f32 v[{d}:{d+1}], v[{d+2}:{d+3}], v[22:23], v[{d}:{d+1}]\nv_add_f32 v{d}, v{d}, v{d+1}")
    scale(0); scale(1); scale(2)
    a("v_permlane16_swap_b32 v32, v36")
    scale(3)
    a("v_add_f32 v32, v32, v36")
    a("v_permlane16_swap_b32 v40, v44\nv_add_f32 v33, v40, v44")
    a(f"ds_write_b64 v3, v[32:33] offset:{RED}")
    STAMP(11)
    a("s_waitcnt lgkmcnt(0)\ns_barrier")
    if stamp: a("s_branch L_fin")
    a("L_exit:\ns_endpgm")
    a("L_s1retry:")
    a("s_sub_u32 s46, s46, 1\ns_cbranch_scc1 L_s1go")
    if s1sleep: a(f"s_sleep {s1sleep}")
    if masked: a("s_mov_b64 exec, vcc")
    a("global_load_dwordx4 v[24:27], v2, s[28:29] sc1\nglobal_load_dwordx4 v[28:31], v2, s[28:29] offset:1024 sc1")
    if masked: a("s_mov_b64 exec, -1")
    a("s_branch L_s1poll")
    a("L_fretry:")
    a("s_sub_u32 s46, s46, 1\ns_cbranch_scc1 L_fok")
    a("global_load_dwordx4 v[20:23], v1, s[28:29] sc1\ns_waitcnt vmcnt(0)\ns_branch L_fw")

    a("L_service:")
    a("s_and_b32 s31, s2, 7\ns_lshr_b32 s37, s32, 4\ns_lshl1_add_u32 s37, s31, s37")
    a("s_lshl2_add_u32 s47, s32, L_table-L_pc")
    a("s_load_dword s30, s[48:49], s47")
    a("s_bfe_u32 s38, s32, 0x20002\ns_and_b32 s39, s32, 3")
    a("s_getreg_b32 s51, hwreg(HW_REG_XCC_ID)")
    a(f"s_and_b32 s51, s51, 15\ns_movk_i32 s57, {Q}")
    a(f"s_mov_b32 s3, {WQ}"); tr_addr128(0, 44, 41, 3, (0, 1, 2, 3))
    a("v_bfe_u32 v4, v0, 3, 1\nv_mul_u32_u24 v4, 1152, v4\nv_lshrrev_b32 v41, 4, v0\nv_lshl_add_u32 v4, v41, 3, v4")
    a("s_mul_i32 s3, s38, 288\nv_add_u32 v4, s3, v4")
    a("v_and_b32 v3, 16, v0\nv_cmp_ne_u32 s[58:59], 0, v3")
    a(f"s_lshl2_add_u32 s3, s37, s38\ns_lshl3_add_u32 s3, s3, s39\ns_lshl_b32 s3, s3, 8\ns_add_u32 s3, s3, {QP}")
    a("v_and_b32 v43, 31, v0\nv_lshl_add_u32 v43, v43, 3, s3\nv_lshrrev_b32 v3, 5, v0\nv_lshl_add_u32 v43, v3, 10, v43")
    a("v_and_b32 v6, 28, v40")
    a(f"s_waitcnt lgkmcnt(0)\ns_load_dword s62, s[28:29], {EP}")
    a("s_waitcnt vmcnt(0)")
    if tlb > 2:
        a("v_min_u32 v41, 2, v0\nv_lshlrev_b32 v41, 21, v41\nv_mov_b32 v42, 0")
        a("global_load_dword v19, v41, s[20:21] nt\nglobal_load_dword v19, v42, s[18:19]\nglobal_load_dword v19, v42, s[22:23]")
    for r in range(9):
        a(f"v_lshlrev_b32 v{20+2*r}, 16, v{10+r}\nv_and_b32 v{21+2*r}, 0xffff0000, v{10+r}")
        a(f"ds_write_b32 v2, v{10+r} offset:{XR + 4*r}")
    pkadd(20, 22, 38)
    for r in range(2, 9): pkadd(38, 20 + 2*r)
    a("v_add_f32 v38, v38, v39")
    def half_sum(r, tmp):
        row_sum(r); a(f"v_mov_b32 v{tmp}, v{r}\nv_permlane16_swap_b32 v{r}, v{tmp}\nv_add_f32 v{r}, v{r}, v{tmp}")
    half_sum(38, 39)
    a(f"v_mul_f32 v38, {f2u(-1/576)}, v38\nv_mov_b32 v39, v38")
    for r in range(9):
        pkadd(20 + 2*r, 38, 10)
        a("v_pk_mul_f32 v[12:13], v[10:11], v[10:11]" if r == 0 else "v_pk_fma_f32 v[12:13], v[10:11], v[10:11], v[12:13]")
    a("v_add_f32 v42, v12, v13")
    half_sum(42, 41)
    a(f"v_mul_f32 v42, {f2u(1/576)}, v42")
    round2(38, 42, 41)
    a(f"v_mov_b32 v39, v38\nv_add_f32 v42, {f2u(1e-5)}, v42"); round1(42)
    a("v_sqrt_f32 v42, v42"); round1(42)
    a("v_rcp_f32 v10, v42\nv_mov_b32 v11, v10")
    for r in range(9):
        x, y = 20 + 2*r, 21 + 2*r
        pkadd(x, 38); round2(x, y, 41)
        a(f"v_pk_mul_f32 v[{x}:{y}], v[{x}:{y}], v[10:11]")
        a(f"v_cvt_pk_bf16_f32 v{x}, v{x}, v{y}")
        a(f"ds_write_b32 v2, v{x} offset:{XN + 4*r}")
    a(f"s_mov_b32 s46, {SPIN*8}")
    a("L_wqw:")
    a(f"ds_read_b32 v3, v6 offset:{CNT}\ns_waitcnt lgkmcnt(0)")
    a("v_cmp_eq_u32 vcc, 0, v3\ns_cbranch_vccz L_wqok")
    a("s_sleep 1\ns_sub_u32 s46, s46, 1\ns_cbranch_scc0 L_wqw")
    a("L_wqok:")
    STAMP(1)
    for v in range(9): a(f"ds_read_b64 v[{20+2*v}:{21+2*v}], v4 offset:{XN + 32*v}")
    a(f"s_mul_i32 s63, s62, {TAGMUL}\ns_add_u32 s63, s63, {TAGADD}")
    a("s_add_u32 s62, s62, 1\ns_and_b32 s60, s62, 0xff\ns_xor_b32 s61, s60, 0x80")
    a("s_bfe_u32 s35, s30, 0x20010\ns_bfe_u32 s36, s30, 0x50018")
    for ct in range(4):
        for v in range(9):
            r = 64 + (ct*9 + v)*2
            a(f"ds_read_b64_tr_b16 v[{r}:{r+1}], v{44+ct} offset:{2048*v}")
    a("s_waitcnt lgkmcnt(0)")
    for v in range(0, 9, 2):
        for ct in range(4):
            r = 64 + (ct*9 + v)*2; d = 140 + 4*ct
            if v < 8: a(f"v_mfma_f32_16x16x32_bf16 v[{d}:{d+3}], v[{20+2*v}:{23+2*v}], v[{r}:{r+3}], {'0' if v == 0 else f'v[{d}:{d+3}]'}")
            else: a(f"v_mfma_f32_16x16x16_bf16 v[{d}:{d+3}], v[{20+2*v}:{21+2*v}], v[{r}:{r+1}], v[{d}:{d+3}]")
    a("v_mov_b32 v23, s63\nv_mov_b32 v22, 0xffffff00")
    a("v_cndmask_b32 v20, v140, v144, s[58:59]\nv_cndmask_b32 v21, v148, v152, s[58:59]")
    a("v_add_u32 v20, 0x80, v20\nv_add_u32 v21, 0x80, v21\nv_and_or_b32 v20, v20, v22, s60\nv_and_or_b32 v21, v21, v22, s61")
    a("global_store_dwordx2 v43, v[20:21], s[28:29] sc1")
    STAMP(2)
    a(f"s_lshl_b32 s3, s37, 13\ns_and_b32 s46, s32, 15\ns_lshl_b32 s46, s46, 4\ns_add_u32 s3, s3, s46\ns_add_u32 s3, s3, {H1}")
    a("v_lshrrev_b32 v8, 1, v0\nv_lshl_add_u32 v8, v8, 8, s3\nv_and_b32 v9, 1, v0\nv_lshl_add_u32 v8, v9, 3, v8")
    a(f"s_lshl_b32 s3, s31, 5\ns_add_u32 s3, s3, s32\ns_lshl_b32 s3, s3, 9\ns_add_u32 s3, s3, {H1}")
    a("v_lshl_add_u32 v4, v0, 3, s3")
    a("global_store_dwordx2 v4, v[56:57], s[28:29] sc1")
    a(f"s_mul_i32 s44, s31, {H2S}\ns_add_u32 s44, s44, {H2}\ns_lshl_b32 s3, s36, 8\ns_add_u32 s3, s3, s44")
    a("v_lshl_add_u32 v5, v0, 2, s3")
    a("s_cmp_eq_u32 s32, 2\ns_cbranch_scc0 L_c1")
    a("v_mov_b32 v58, -1\nv_mov_b32 v59, -1\ns_add_u32 s3, s44, 1024\nv_lshl_add_u32 v4, v0, 4, s3")
    for k in range(3): a(f"global_store_dwordx4 v4, v[56:59], s[28:29] offset:{1024*(k-1)} sc1")
    a("L_c1:")
    a("s_and_b32 s46, s32, 15\ns_and_b32 s3, s32, 16\ns_lshl1_add_u32 s46, s3, s46\ns_lshl2_add_u32 s46, s46, s44\ns_add_u32 s46, s46, 2304")
    a("v_bfe_u32 v9, v0, 3, 1\nv_lshl_add_u32 v9, v9, 6, s46")
    a("s_lshl_b32 s3, s31, 5\ns_add_u32 s3, s3, s32")
    a(f"s_lshl_b32 s3, s3, 3\ns_add_u32 s3, s3, {FL}\nv_mov_b32 v4, s3\nv_mov_b32 v22, s51")
    a(f"s_bfe_u32 s45, s32, 0x10003\ns_lshl3_add_u32 s44, s37, s45\ns_lshl_b32 s44, s44, 10\ns_add_u32 s44, s44, {QP + 4096}")
    a("v_lshl_add_u32 v44, v0, 4, s44")
    a("s_waitcnt vmcnt(0)")
    a("s_mov_b64 exec, 1\nglobal_store_dwordx2 v4, v[22:23], s[28:29] sc1\ns_mov_b64 exec, -1")
    if qmark:
        a(f"s_mov_b32 s46, {SPIN*8}")
        a("L_qmw:")
        a(f"ds_read_b32 v3, v6 offset:{QM}\ns_waitcnt lgkmcnt(0)")
        a("v_cmp_ne_u32 vcc, 0, v3\ns_cbranch_vccnz L_qmok")
        a("s_sleep 2\ns_sub_u32 s46, s46, 1\ns_cbranch_scc0 L_qmw")
        a("L_qmok:")
    STAMP(3)
    a(f"s_mov_b32 s46, {SPIN}")
    a("L_qpoll:")
    for k in range(4): a(f"global_load_dwordx4 v[{64+4*k}:{67+4*k}], v44, s[28:29] offset:{2048*k - 4096} sc1")
    a("s_waitcnt vmcnt(0)")
    for k in range(16): a(f"v_xor_b32 v{64+k}, s{60 + (k & 1)}, v{64+k}")
    a("v_or_b32 v20, v64, v65")
    for k in range(1, 8): a(f"v_or3_b32 v20, v20, v{64+2*k}, v{65+2*k}")
    a("v_and_b32 v20, 0xff, v20\nv_cmp_ne_u32 vcc, 0, v20\ns_cbranch_vccz L_qgo")
    a(f"s_sub_u32 s46, s46, 1\ns_cbranch_scc0 L_qpoll")
    a("L_qgo:")
    pkadd(64, 68); pkadd(66, 70); pkadd(72, 76); pkadd(74, 78); pkadd(64, 72); pkadd(66, 74)
    a("v_cvt_pk_bf16_f32 v20, v64, v66\nv_cvt_pk_bf16_f32 v21, v65, v67")
    a(f"v_and_b32 v4, 0xc0, v40\nv_add3_u32 v4, v4, v40, s57\nds_write2_b32 v4, v20, v21 offset0:0 offset1:16")
    STAMP(4)
    s2_pre(42)
    sel_masks(0, 12, 42)
    a(f"s_lshl_b32 s3, s31, 8\ns_add_u32 s3, s3, {FL}\nv_lshl_add_u32 v44, v0, 3, s3\nv_and_b32 v45, 7, v0\nv_lshlrev_b32 v45, 8, v45\nv_add_u32 v45, {FL + 16}, v45")
    a("v_cmp_gt_u32 vcc, 32, v0\nv_cndmask_b32 v44, v45, v44, vcc")
    a("v_and_b32 v4, 15, v0\nv_lshlrev_b32 v4, 3, v4")
    def st_wait(name, all_):
        a(f"s_mov_b32 s46, {SPIN*8}")
        a(f"L_{name}w:")
        a(f"ds_read_b64 v[60:61], v4 offset:{STATW}\ns_waitcnt lgkmcnt(0)")
        a(f"v_cmp_eq_u32 vcc, 0, v61\ns_cbranch_vccz L_{name}ok" if all_ else f"v_cmp_ne_u32 vcc, 0, v61\ns_cbranch_vccnz L_{name}ok")
        a(f"s_sleep 2\ns_sub_u32 s46, s46, 1\ns_cbranch_scc0 L_{name}w")
        a(f"L_{name}ok:")
    st_wait("st1", False)
    STAMP(5)
    a("global_load_dwordx2 v[64:65], v44, s[28:29] sc1")
    st_wait("st", True)
    STAMP(6)
    def ticket():
        a("s_mov_b32 s38, 1\ns_xor_b32 s39, s36, s31\ns_and_b32 s39, s39, 1\ns_lshl_b32 s3, s39, 7")
        if loct == 1: a("s_lshl_b32 s3, s31, 5")
        if loct == 2:
            a("s_lshr_b32 s39, s31, 1\ns_xor_b32 s3, s39, s31\ns_and_b32 s3, s3, 1\ns_lshl_b32 s3, s3, 7\ns_lshl_b32 s39, s39, 3\ns_lshl_b32 s38, 1, s39")
        a("s_cmp_eq_u32 s35, 1\ns_cbranch_scc1 L_notick")
        a("s_atomic_add s38, s[26:27], s3 glc")
        a("L_notick:")
    if not tick_lv: ticket()
    a("v_mov_b32 v62, v60"); oct_red(62, "v_max_f32")
    a("v_sub_f32 v60, v60, v62\nv_exp_f32 v60, v60\nv_mul_f32 v61, v61, v60"); oct_red(61, "v_add_f32")
    a("v_rcp_f32 v59, v61\nv_log_f32 v61, v61\nv_mul_f32 v60, v60, v59\nv_add_f32 v62, v61, v62")
    a(f"s_mov_b32 s46, {SPIN}")
    a("L_fpoll:")
    a("s_waitcnt vmcnt(0)\nv_cmp_ne_u32 vcc, s63, v65\ns_cbranch_vccz L_fgo")
    a("s_sub_u32 s46, s46, 1\ns_cbranch_scc1 L_fgo")
    a("s_sleep 8\nglobal_load_dwordx2 v[64:65], v44, s[28:29] sc1\ns_branch L_fpoll")
    a("L_fgo:")
    a("v_cmp_ne_u32 vcc, s51, v64\ns_mov_b32 s34, vcc_lo")
    if not local: a("s_mov_b32 s34, 1")
    a("s_cmp_eq_u32 s35, 1\ns_cbranch_scc0 L_nof")
    a(f"s_lshl3_add_u32 s3, s31, s36\ns_lshl_b32 s3, s3, 11\ns_add_u32 s3, s3, {H1}\nv_lshl_add_u32 v42, v0, 5, s3")
    a("s_cmp_eq_u32 s36, 8\ns_cbranch_scc0 L_pw")
    a(f"s_mul_i32 s3, s31, {H2S}\ns_add_u32 s3, s3, {ST}\nv_add_u32 v42, s3, v40")
    a("L_pw:")
    a("global_load_dword v58, v42, s[28:29] sc1")
    a("L_nof:")
    a("s_mov_b64 exec, 0x101\ns_cmp_eq_u32 s34, 0\ns_cbranch_scc1 L_stnear")
    a("global_store_dword v9, v62, s[28:29] sc1\ns_branch L_stdone")
    a("L_stnear:\nglobal_store_dword v9, v62, s[28:29]\nL_stdone:\ns_mov_b64 exec, -1")
    a(f"v_lshrrev_b32 v4, 1, v4\nds_write_b32 v4, v60 offset:{CF}")
    a("v_lshrrev_b32 v4, 5, v0\nv_lshlrev_b32 v4, 5, v4")
    a("s_waitcnt lgkmcnt(0)")
    a(f"ds_read_b128 v[48:51], v4 offset:{CF}\nds_read_b128 v[52:55], v4 offset:{CF+16}")
    def lv_wait(name, all_):
        a(f"v_and_b32 v4, 28, v40\ns_mov_b32 s46, {SPIN*8}")
        a(f"L_{name}w:")
        a(f"ds_read_b32 v3, v4 offset:{LV}\ns_waitcnt lgkmcnt(0)")
        a(f"v_cmp_eq_u32 vcc, 0, v3\ns_cbranch_vccz L_{name}ok" if all_ else f"v_cmp_ne_u32 vcc, 0, v3\ns_cbranch_vccnz L_{name}ok")
        a(f"s_sleep 1\ns_sub_u32 s46, s46, 1\ns_cbranch_scc0 L_{name}w")
        a(f"L_{name}ok:")
    if tick_lv:
        lv_wait("lv", False)
        ticket()
    a("s_waitcnt lgkmcnt(0)")
    a("s_mov_b32 s47, 0")
    if loct == 2: a("s_mul_i32 s44, s38, 0x01010101\ns_lshr_b32 s44, s44, 24\ns_lshr_b32 s38, s38, s39\ns_and_b32 s38, s38, 0xff")
    for th in ntr: a(f"s_cmp_ge_u32 s{44 if loct == 2 else 38}, {th}\ns_addc_u32 s47, s47, 0")
    a(f"s_cmp_lt_u32 s38, {2 if loct else 9}\ns_cselect_b32 s47, {ntrs}, s47")
    NTR = max(len(ntr), ntrs)
    if loct:
        a("s_lshr_b32 s44, s38, 1\ns_lshl_b32 s45, s44, 2\ns_mov_b32 s58, 0x65421003\ns_mov_b32 s59, 7\ns_lshr_b64 s[58:59], s[58:59], s45\ns_and_b32 s45, s58, 7")
        a("s_lshl3_add_u32 s45, s31, s45\ns_add_u32 s3, s31, 64\ns_cmp_eq_u32 s44, 1\ns_cselect_b32 s45, s3, s45")
        a("s_and_b32 s3, s38, 1\ns_lshl1_add_u32 s45, s45, s3\ns_mul_i32 s3, s31, 5\ns_add_u32 s3, s3, s38\ns_add_u32 s3, s3, 126")
        a("s_cmp_lt_u32 s38, 18\ns_cselect_b32 s38, s45, s3")
    else:
        a("s_lshl3_add_u32 s44, s38, 3\ns_sub_u32 s45, s38, 5\ns_mul_i32 s45, s45, 37\ns_lshr_b32 s45, s45, 8\ns_add_u32 s45, s45, s38\ns_sub_u32 s45, s45, 9")
        a("s_cmp_lt_u32 s38, 9\ns_cselect_b32 s44, s44, s45\ns_cmp_lt_u32 s38, 72\ns_cselect_b32 s38, s44, s38\ns_lshl1_add_u32 s38, s38, s39")
    a(f"s_and_b32 s3, s62, 0xfff\ns_lshl4_add_u32 s3, s3, s47")
    a(f"v_mov_b32 v4, 0\nv_mov_b32 v2, s38\nv_mov_b32 v3, s3\nds_write_b64 v4, v[2:3] offset:{ROLE}")
    if NTR:
        a("s_cmp_eq_u32 s35, 1\ns_cbranch_scc1 L_notr\ns_cmp_lt_u32 s38, 144\ns_cbranch_scc0 L_notr\ns_cmp_eq_u32 s47, 0\ns_cbranch_scc1 L_notr")
        lv_wait("lv2", lvall)
        a(f"s_mul_i32 s45, s38, {32*1152}")
        for rb in range(NTR):
            if rb: a(f"s_cmp_gt_u32 s47, {rb}\ns_cbranch_scc0 L_notr")
            for lc in range(9):
                a(f"s_mov_b32 m0, {W + 36864 + 4096*lc + 1024*rb}")
                if rb or lc: a(f"s_add_u32 s45, s45, {128 if lc else 8*1152 - 8*128}")
                a("buffer_load_dwordx4 v7, s[52:55], s45 offen nt lds")
        a("L_notr:")
    a("v_lshlrev_b32 v4, 4, v0")
    a("s_waitcnt lgkmcnt(0)")
    STAMP(7)
    a("s_barrier")
    for w in range(8): a(f"ds_read_b128 v[{64+4*w}:{67+4*w}], v4 offset:{OP + 1024*w}")
    STAMP(8)
    for w in range(8):
        a(f"s_waitcnt lgkmcnt({0 if stamp else 7-w})")
        c = 48 + (w & ~1); sel = "op_sel:[0,1,0]" if w & 1 else "op_sel_hi:[1,0,1]"
        for k in (0, 2):
            if w == 0: a(f"v_pk_mul_f32 v[{60+k}:{61+k}], v[{64+k}:{65+k}], v[48:49] op_sel_hi:[1,0]")
            else: a(f"v_pk_fma_f32 v[{60+k}:{61+k}], v[{64+4*w+k}:{65+4*w+k}], v[{c}:{c+1}], v[{60+k}:{61+k}] {sel}")
    a("s_cmp_eq_u32 s34, 0")
    a("v_cvt_pk_bf16_f32 v60, v60, v61\nv_cvt_pk_bf16_f32 v61, v62, v63")
    a("s_cbranch_scc0 L_pubfar")
    a("global_store_dwordx2 v8, v[60:61], s[28:29]")
    a("L_pubdone:")
    STAMP(9)
    a("s_cmp_eq_u32 s35, 1\ns_cbranch_scc0 L_dyns")
    a("v_lshlrev_b32 v4, 3, v0")
    a("s_barrier")
    for w in range(4): a(f"ds_read2st64_b64 v[{64+4*w}:{67+4*w}], v4 offset0:{(RED + 1024*w)//512} offset1:{(RED + 1024*w + 512)//512}")
    STAMP(10)
    for w in range(4):
        a(f"s_waitcnt lgkmcnt({0 if stamp else 3-w})")
        pkadd(64 + 4*w, 66 + 4*w)
        if w: pkadd(64, 64 + 4*w)
    a("v_cvt_pk_bf16_f32 v64, v64, v65\nglobal_store_dword v5, v64, s[28:29] sc1")
    STAMP(11)
    a("s_branch L_fin" if stamp else "s_endpgm")
    a("L_pubfar:")
    a("global_store_dwordx2 v8, v[60:61], s[28:29] sc1\ns_branch L_pubdone")

    a("L_dyns:")
    a("s_cmp_lt_u32 s38, 144\ns_cbranch_scc1 L_s2\ns_branch L_s3s")
    a("L_dyn:")
    a(f"v_mov_b32 v4, 0\nds_read_b64 v[4:5], v4 offset:{ROLE}\ns_waitcnt lgkmcnt(0)\nv_readfirstlane_b32 s38, v4\nv_readfirstlane_b32 s47, v5")
    a("s_lshr_b32 s62, s47, 4\ns_and_b32 s47, s47, 15")
    a("s_cmp_lt_u32 s38, 144\ns_cbranch_scc0 L_s3w")
    a("L_s2:")
    s2_setup()
    a("s_barrier")
    if fine2: STAMP(1)
    if stamp: a("s_mov_b32 s35, 2")
    a("global_load_ushort v21, v21, s[18:19]")
    def h4_touch():
        a(f"s_mul_i32 s3, s33, {4*18432}\ns_lshl_b32 s44, s38, 7\ns_add_u32 s3, s3, s44\ns_add_u32 s3, s3, {H4}")
        a(f"v_lshrrev_b32 v18, 4, v0\nv_mul_u32_u24 v18, 18432, v18\nv_add_u32 v18, s3, v18")
        if h4pf < 4: a(f"global_load_dword v19, v18, s[28:29] {h4f}")
    if h4pf == 1: h4_touch()
    for n, k in enumerate(ORDER):
        if 4 <= k < 4 + NTR:
            a(f"s_cmp_gt_u32 s47, {k-4}\ns_cbranch_scc1 L_trd{k}"); s2_dma(k, 6, 7); a(f"L_trd{k}:")
            continue
        if stagger and n == 6 and EARLY2 < 6:
            if h4pf == 2: h4_touch()
            if fine2: STAMP(2)
            a("s_barrier")
        s2_dma(k, 6, 7)
    if fine2:
        STAMP(3); a("s_waitcnt vmcnt(6)"); STAMP(4); a("s_waitcnt vmcnt(2)"); STAMP(5)
    a("v_bfe_u32 v4, v0, 4, 1\nv_and_b32 v5, 15, v0\nv_lshl_add_u32 v5, v5, 1, v4")
    a("s_lshl_b32 s3, s33, 8\nv_and_b32 v6, 24, v5\nv_lshl_add_u32 v7, v6, 3, s3\nv_and_b32 v6, 3, v5\nv_lshl_add_u32 v7, v6, 4, v7")
    a("v_and_b32 v6, 4, v5\nv_lshl_add_u32 v7, v6, 1, v7")
    a("v_lshrrev_b32 v4, 4, v5\nv_mul_u32_u24 v4, 1152, v4\nv_and_b32 v6, 8, v5\nv_lshl_add_u32 v4, v6, 3, v4\nv_and_b32 v6, 7, v5\nv_lshl_add_u32 v4, v6, 2, v4")
    a(f"s_lshl_b32 s3, s33, 7\nv_add_u32 v4, s3, v4\nds_read_b32 v50, v4 offset:{XR}\nds_read_b32 v51, v4 offset:{XR + 32}")
    for k in range(4): a(f"v_and_b32 v{12+k}, 0x3f803f80, v{12+k}")
    a("v_lshrrev_b32 v5, 4, v0\nv_mul_u32_u24 v8, 80, v0")
    a("v_bfe_u32 v4, v0, 3, 1\nv_mul_u32_u24 v20, 80, v4")
    a(f"s_lshl_b32 s3, s33, 8\ns_add_u32 s3, s3, {Y}\nv_lshl_add_u32 v9, v4, 7, s3\nv_lshl_add_u32 v9, v5, 4, v9")
    a(f"v_and_b32 v4, 3, v0\nv_cmp_eq_u32 vcc, 1, v4\nv_mov_b32 v6, {ONES}\nv_cndmask_b32 v9, v9, v6, vcc")
    a("v_lshl_add_u32 v4, v5, 2, v4\nv_bfe_u32 v6, v0, 2, 2\nv_lshl_add_u32 v4, v6, 4, v4")
    a("s_lshl_b32 s3, s33, 3\nv_mul_u32_u24 v10, 80, v4\nv_add_u32 v10, s3, v10\nv_add_u32 v11, s3, v20")
    a("s_mov_b32 s60, 1\ns_movk_i32 s61, 0x100")
    if h4pf >= 4: h4_touch()
    a(f"s_lshl_b32 s3, s33, 8\ns_add_u32 s3, s3, {H2}")
    a(f"v_mul_u32_u24 v4, {H2S}, v5\nv_and_b32 v24, 15, v0\nv_lshl_add_u32 v24, v24, 4, s3\nv_add_u32 v24, v24, v4\nv_add_u32 v25, {4*H2S}, v24")
    a(f"s_sub_u32 s39, s33, 1\ns_min_u32 s39, s39, 2")
    a(f"s_mul_i32 s3, s39, {12*18432}\ns_lshl_b32 s44, s38, 7\ns_add_u32 s3, s3, s44\ns_add_u32 s3, s3, {H4}")
    a("v_mul_u32_u24 v4, 18432, v5\nv_and_b32 v28, 15, v0\nv_lshl_add_u32 v28, v28, 3, s3\nv_add_u32 v28, v28, v4")
    a(f"v_add_u32 v29, {4*18432}, v28\nv_add_u32 v30, {8*18432}, v28")
    a("v_and_b32 v4, 16, v0\nv_cmp_ne_u32 s[58:59], 0, v4")
    a("v_lshrrev_b32 v4, 2, v0\nv_lshl_add_u32 v4, v4, 6, s50\nv_and_b32 v36, 3, v0\nv_lshl_add_u32 v4, v36, 3, v4")
    a("v_bfe_u32 v36, v0, 4, 1\nv_lshl_add_u32 v36, v36, 5, v4\nv_xor_b32 v37, 32, v36")
    a(f"s_mul_i32 s3, s39, {3*4096}\ns_add_u32 s3, s3, {W+36864}"); tr_addr128(0, 32, 38, 3)
    if b5early:
        a("s_waitcnt vmcnt(2)")
        a("s_barrier")

        a("s_sub_u32 s39, s33, 1\ns_cmp_lt_u32 s39, 3\ns_cbranch_scc0 L_s2nw2")
        for ln in range(3):
            for ct in range(4):
                for eh in range(2):
                    r = 80 + 16*ln + 4*ct + 2*eh
                    a(f"ds_read_b64_tr_b16 v[{r}:{r+1}], v{32+ct} offset:{4096*ln + 2048*eh}")
        a("L_s2nw2:")
    a("s_waitcnt vmcnt(0) lgkmcnt(0)")
    STAMP(10)
    for k in range(2): a(f"global_load_dwordx4 v[{40+4*k}:{43+4*k}], v{24+k}, s[28:29] sc1")
    for ct in range(2):
        for vl in range(4):
            r = 64 + ct*8 + 2*vl
            a(f"ds_read_b64_tr_b16 v[{r}:{r+1}], v{36+ct} offset:{1024*vl}")
    a("v_lshlrev_b32 v21, 16, v21\nv_lshlrev_b32 v48, 16, v50\nv_lshlrev_b32 v49, 16, v51\nv_and_b32 v50, 0xffff0000, v50\nv_and_b32 v51, 0xffff0000, v51")
    if not b5early:
        a("s_barrier")

        a("s_sub_u32 s39, s33, 1\ns_cmp_lt_u32 s39, 3\ns_cbranch_scc0 L_s2nw2")
        for ln in range(3):
            for ct in range(4):
                for eh in range(2):
                    r = 80 + 16*ln + 4*ct + 2*eh
                    a(f"ds_read_b64_tr_b16 v[{r}:{r+1}], v{32+ct} offset:{4096*ln + 2048*eh}")
        a("L_s2nw2:")
    c0 = -2 * LOG2E * 0.7978845608028654
    a(f"v_mov_b32 v34, {f2u(c0)}\nv_mov_b32 v35, {f2u(c0*0.044715)}\nv_mov_b32 v36, {f2u(1 + 1e-5)}\nv_mov_b32 v37, {f2u(1e-10)}\nv_mov_b32 v38, {f2u(1/576)}\nv_mov_b32 v39, v38")
    a("v_mov_b32 v33, 0xfffff000\ns_xor_b32 s63, s62, 0x880")
    def gf_store(skip):
        a(f"s_cmp_eq_u32 s57, 0\ns_cbranch_scc0 {skip}\nglobal_store_dwordx2 v26, v[16:17], s[28:29] sc1")
    if gf:
        a(f"s_and_b32 s57, s38, 0x8f\ns_xor_b32 s3, s33, 4\ns_or_b32 s57, s57, s3\ns_lshl3_add_u32 s3, s38, {GF}")
        a("v_and_b32 v26, 15, v0\nv_lshl_add_u32 v26, v26, 3, s3\nv_mov_b32 v16, s62\nv_mov_b32 v17, s63")
    a(f"s_mov_b32 s46, {SPIN}")
    a("L_s2poll:")
    a("s_waitcnt vmcnt(1)\nv_mfma_f32_16x16x32_bf16 v[56:59], v[12:15], v[40:43], v[48:51]")
    a("s_waitcnt vmcnt(0)\nv_mfma_f32_16x16x32_bf16 v[56:59], v[12:15], v[44:47], v[56:59]")
    a("v_cmp_u_f32 vcc, v56, v56")
    a("v_cvt_pk_bf16_f32 v56, v56, v57\nv_cvt_pk_bf16_f32 v57, v58, v59")
    a("s_cbranch_vccnz L_s2chk")
    a("L_s2go:")
    STAMP(11)
    a(f"ds_write_b64 v7, v[56:57] offset:{Y}")
    a("ds_read_b128 v[128:131], v9\nds_read_b128 v[132:135], v9 offset:64")
    if gf == 2: gf_store("L_nogf"); a("L_nogf:")
    a("s_waitcnt lgkmcnt(0)")
    for ct in range(3):
        for u in range(2):
            d = 136 + 4*ct; r = 64 + ct*8 + 4*u if ct < 2 else 128 + 4*u
            a(f"v_mfma_f32_16x16x32_bf16 v[{d}:{d+3}], v[{128+4*u}:{131+4*u}], v[{r}:{r+3}], {'0' if u == 0 else f'v[{d}:{d+3}]'}")
    if gf == 3: gf_store("L_nogf"); a("L_nogf:")
    a("s_cmp_lt_u32 s39, 3")
    a("v_cndmask_b32 v136, v136, v140, s[58:59]\nv_cndmask_b32 v137, v137, v141, s[58:59]")
    a(f"ds_write_b64 v10, v[136:137] offset:{T}\ns_mov_b64 exec, s[60:61]\nds_write_b64 v11, v[144:145] offset:{SS}\ns_mov_b64 exec, -1")
    if fine: STAMP(1)
    a("s_waitcnt lgkmcnt(0)\ns_barrier")
    a("s_cbranch_scc0 L_s2x" if gf == 1 else "s_cbranch_scc0 L_fin")
    if fine: STAMP(2)
    for k in range(4): a(f"ds_read_b128 v[{60+4*k}:{63+4*k}], v20 offset:{SS + 16*k}")
    a(f"ds_read_b64 v[76:77], v20 offset:{SS + 64}")
    for k in range(4): a(f"ds_read_b128 v[{128+4*k}:{131+4*k}], v8 offset:{T + 16*k}")
    a(f"ds_read_b64 v[144:145], v8 offset:{T + 64}")
    for k in range(4):
        a(f"s_waitcnt lgkmcnt({0 if fine else 9-k})"); pkadd(60 + 4*k, 62 + 4*k)
        if k == 1: pkadd(60, 64)
    a(f"s_waitcnt lgkmcnt({0 if fine else 5})")
    pkadd(68, 72); pkadd(60, 76); pkadd(60, 68)
    a("v_pk_mul_f32 v[60:61], v[60:61], v[38:39]\nv_fma_f32 v60, -v61, v61, v60\nv_max_f32 v60, 0, v60")
    a("v_fma_f32 v62, v60, v36, v37\nv_rsq_f32 v62, v62")
    a("s_waitcnt lgkmcnt(0)")
    for k in range(4): pkadd(128 + 4*k, 130 + 4*k)
    pkadd(128, 132); pkadd(136, 140); pkadd(128, 144); pkadd(128, 136)
    a("v_fma_f32 v128, -v61, v129, v128\nv_fma_f32 v128, v62, v128, v21")
    a("v_mul_f32 v129, v128, v128\nv_fma_f32 v129, v129, v35, v34\nv_mul_f32 v129, v128, v129")
    a("v_exp_f32 v129, v129\nv_add_f32 v129, 1.0, v129\nv_rcp_f32 v129, v129\nv_mul_f32 v128, v128, v129")
    a(f"v_mov_b32_dpp v129, v128 row_shl:1 {DPPF}")
    a("v_cvt_pk_bf16_f32 v128, v128, v129")
    for r in (1, 2, 3): a(f"v_mov_b32_dpp v{128+r}, v128 row_shl:{2*r} {DPPF}")
    if fine: STAMP(3)
    def fold(ln):
        b = 80 + 16*ln
        a(f"v_permlane16_swap_b32 v{b+8}, v{b+12}\nv_permlane16_swap_b32 v{b}, v{b+4}\nv_and_or_b32 v{b+1}, v{b+8}, v33, s63\nv_and_or_b32 v{b}, v{b}, v33, s62")
        a(f"global_store_dwordx2 v{28 + ln}, v[{b}:{b+1}], s[28:29] sc1")
    for t in range(12):
        a(f"v_mfma_f32_16x16x32_bf16 v[{80+4*t}:{83+4*t}], v[128:131], v[{80+4*t}:{83+4*t}], 0")
    for ln in range(3): fold(ln)
    STAMP(12)
    a("s_branch L_fin" if stamp else "s_endpgm")
    if gf == 1:
        a("L_s2x:"); gf_store("L_fin"); a("s_branch L_fin")
    a("L_s2chk:")
    for k in range(2):
        r = 40 + 4*k
        a(f"v_max3_u32 v31, v{r}, v{r+1}, v{r+2}\nv_max_u32 v31, v31, v{r+3}\nv_cmp_eq_u32 s[{94+2*k}:{95+2*k}], -1, v31")
    a("s_or_b64 s[44:45], s[94:95], s[96:97]\ns_cbranch_scc0 L_s2go")
    a("s_sub_u32 s46, s46, 1\ns_cbranch_scc1 L_s2go")
    if s2sleep: a(f"s_sleep {s2sleep}")
    for k in range(2):
        a(f"s_mov_b64 exec, s[{94+2*k}:{95+2*k}]\ns_cbranch_execz L_s2r{k}")
        a(f"global_load_dwordx4 v[{40+4*k}:{43+4*k}], v{24+k}, s[28:29] sc1")
        a(f"L_s2r{k}:")
    a("s_mov_b64 exec, -1\ns_waitcnt vmcnt(0)\ns_branch L_s2poll")

    def red8(b):
        a(f"v_permlane32_swap_b32 v{b}, v{b+2}\nv_permlane32_swap_b32 v{b+1}, v{b+3}")
        pkadd(b, b + 2)
        a(f"v_permlane16_swap_b32 v{b}, v{b+1}\nv_add_f32 v{b}, v{b}, v{b+1}")
        a(f"v_add_f32_dpp v{b}, v{b}, v{b} row_ror:8 {DPPF}")
    a("L_s3s:")
    if stamp: a("s_mov_b32 s35, 0")
    a("s_sub_u32 s38, s38, 144\ns_cmp_ge_u32 s38, 36\ns_cbranch_scc1 L_fin")
    if stamp: a("s_mov_b32 s35, 3")
    a("s_lshr_b32 s3, s38, 2\ns_lshl_b32 s3, s3, 6\ns_and_b32 s44, s38, 1\ns_lshl_b32 s44, s44, 5\ns_add_u32 s3, s3, s44")
    a("v_and_b32 v4, 7, v0\nv_lshl_add_u32 v6, v4, 1, s3\nv_and_b32 v5, 16, v0\nv_add_u32 v6, v5, v6\nv_lshrrev_b32 v5, 5, v0\nv_add_u32 v6, v6, v5")
    a("v_lshlrev_b32 v6, 1, v6")
    a("s_bfe_u32 s3, s38, 0x10001\ns_mul_i32 s3, s3, 1152\nv_add_u32 v7, s3, v6")
    a("global_load_ushort v20, v7, s[4:5]\nglobal_load_ushort v21, v6, s[22:23]")
    a(f"s_lshl_b32 s3, s38, 6\ns_add_u32 s3, s3, {H2}")
    a(f"v_lshrrev_b32 v5, 3, v0\nv_mul_u32_u24 v5, {H2S}, v5\nv_lshl_add_u32 v5, v4, 3, v5\nv_add_u32 v5, s3, v5")
    a(f"s_mov_b32 s46, {SPIN}")
    a("L_s3hpoll:")
    a("global_load_dwordx2 v[28:29], v5, s[28:29] sc1\ns_waitcnt vmcnt(0)")
    a("v_max_u32 v8, v28, v29")
    a("v_cmp_eq_u32 vcc, -1, v8\ns_cbranch_vccz L_s3hgo")
    a(f"s_sleep {hsleep}\ns_sub_u32 s46, s46, 1\ns_cbranch_scc0 L_s3hpoll")
    a("L_s3hgo:")
    STAMP(10)
    a("v_lshlrev_b32 v24, 16, v28\nv_and_b32 v25, 0xffff0000, v28\nv_lshlrev_b32 v26, 16, v29\nv_and_b32 v27, 0xffff0000, v29")
    red8(24)
    a("v_lshlrev_b32 v20, 16, v20\nv_lshlrev_b32 v21, 16, v21\nv_add_f32 v20, v20, v24"); round1(20)
    a("v_add_f32 v20, v20, v21")
    a("s_cmp_eq_u32 s38, 0\ns_cbranch_scc0 L_noep")
    a(f"v_mov_b32 v41, s62\nv_mov_b32 v42, {EP}\ns_mov_b64 exec, 1")
    a("global_store_dword v42, v41, s[28:29] sc1\ns_mov_b64 exec, -1")
    a("L_noep:")
    a("s_and_b32 s62, s62, 0xfff")
    if egate:
        a(f"s_movk_i32 s3, {GF}" if gf else f"s_mul_i32 s3, s38, 18432\ns_add_u32 s3, s3, {H4}")
        a(f"v_lshl_add_u32 v5, v0, 7, s3\ns_mov_b32 s46, {SPIN}\ns_mov_b64 exec, {(1 << egate) - 1}")
        a("L_eg:")
        a("global_load_dwordx2 v[24:25], v5, s[28:29] sc1\ns_waitcnt vmcnt(0)")
        a("v_xor_b32 v25, 0x880, v25\nv_xor_b32 v24, s62, v24\nv_xor_b32 v25, s62, v25\nv_or_b32 v24, v24, v25\nv_lshlrev_b32 v24, 20, v24")
        a("v_cmp_eq_u32 vcc, 0, v24\ns_cbranch_vccnz L_egok\ns_sub_u32 s46, s46, 1\ns_cbranch_scc0 L_eg")
        a("L_egok:\ns_mov_b64 exec, -1")
    a("s_branch L_s3c")
    a("L_s3w:")
    if stamp: a("s_mov_b32 s35, 0")
    a("s_sub_u32 s38, s38, 144\ns_cmp_ge_u32 s38, 36\ns_cbranch_scc1 L_fin")
    if stamp: a("s_mov_b32 s35, 3")
    a("v_mov_b32 v7, 0")
    a("L_s3c:")
    a("s_xor_b32 s63, s62, 0x880")
    a(f"s_mul_i32 s3, s38, 18432\ns_lshl_b32 s44, s33, 11\ns_add_u32 s3, s3, s44\ns_add_u32 s3, s3, {H4}")
    a("v_lshl_add_u32 v1, v0, 4, s3")
    a("v_lshlrev_b32 v2, 2, v0\ns_lshl_b32 s3, s33, 8\nv_add_u32 v3, s3, v2")
    a(f"s_mov_b32 s46, {SPIN}")
    if h4pf == 3:
        a("s_cmp_eq_u32 s33, 0\ns_cbranch_scc1 L_nopf3")
        a(f"s_mul_i32 s3, s38, 18432\ns_sub_u32 s44, s33, 1\ns_mul_i32 s44, s44, 2304\ns_add_u32 s3, s3, s44\ns_add_u32 s3, s3, {H4}")
        a(f"v_min_u32 v4, 17, v0\nv_lshl_add_u32 v4, v4, 7, s3\nglobal_load_dword v19, v4, s[28:29]\ns_waitcnt vmcnt(0)\nglobal_load_dword v19, v4, s[28:29] sc1 nt")
        a("L_nopf3:")
    a("s_barrier")
    if s3d: a(f"s_sleep {s3d}")
    h4l = [f"global_load_dwordx4 v[{24+4*k}:{27+4*k}], v1, s[28:29] offset:{1024*k} sc1" for k in range(2)]
    if p3f: a(h4l[0]); a(h4l[1]); a("s_waitcnt vmcnt(0)\ns_branch L_h4c")
    ppoll("h4", [24, 28], h4l, p3, p3s, 8, tagged=32, init=not p3f)
    pkadd(32, 36); pkadd(34, 38)
    red8(32)
    a("L_s3go:")
    a(f"ds_write_b32 v3, v32 offset:{FIN}")
    a("s_cmp_eq_u32 s33, 0\ns_waitcnt lgkmcnt(0)\ns_barrier")
    a("s_cbranch_scc0 L_fin")
    for k in range(4): a(f"ds_read2st64_b32 v[{40+2*k}:{41+2*k}], v2 offset0:{FIN//256 + 2*k} offset1:{FIN//256 + 2*k + 1}")
    a(f"ds_read_b32 v48, v2 offset:{FIN + 2048}")
    STAMP(11)
    a("s_mov_b32 exec_lo, 0x00ff00ff\ns_mov_b32 exec_hi, 0x00ff00ff")
    a("s_waitcnt lgkmcnt(0)")
    pkadd(40, 42); pkadd(44, 46); a("v_add_f32 v48, v48, v20"); pkadd(40, 44)
    a("v_add_f32 v40, v40, v41\nv_add_f32 v40, v40, v48\nv_cvt_pk_bf16_f32 v40, v40, v40")
    a(f"global_store_short v7, v40, s[24:25] {outf}")
    a("L_fin:")
    if stamp:
        if isinstance(swave, str): a(f"s_cmp_eq_u32 s35, 2\ns_cselect_b32 s3, {swave[4:] or 1}, 0\ns_cmp_eq_u32 s33, s3\ns_cbranch_scc0 L_exit2")
        else: a(f"s_cmp_eq_u32 s33, {swave}\ns_cbranch_scc0 L_exit2")
        a("s_memrealtime s[90:91]\ns_waitcnt vmcnt(0)\ns_memrealtime s[92:93]")
        a("s_mov_b64 exec, 1\ns_waitcnt lgkmcnt(0)")
        a(f"s_lshl_b32 s3, s2, 7\ns_add_u32 s3, s3, {STAMP_OFF}\nv_mov_b32 v1, s3")
        a("v_mov_b32 v2, s35\nv_mov_b32 v3, s38\nglobal_store_dwordx2 v1, v[2:3], s[28:29] offset:120")
        for i in range(15):
            a(f"v_mov_b32 v2, s{64+2*i}\nv_mov_b32 v3, s{65+2*i}\nglobal_store_dwordx2 v1, v[2:3], s[28:29] offset:{8*i}")
    a("L_exit2:\ns_endpgm")
    if stamp:
        for key, lo in (("s_load_dword s62, s[28:29], 0", 1), ("s_add_u32 s8, s8, s3", 2)):
            i = L.index(key)
            L[i:i] = [f"s_mov_b64 s[{64+2*k}:{65+2*k}], 0" for k in range(lo, 15)]
    body = hazard.run(L)
    tab = []
    for p in table:
        start = 0
        for (role, ridx, n) in p:
            assert NMAX - NSKIP <= n <= NMAX
            start += n
            tab.append(start | (n << 8) | (role << 16) | (ridx << 24))
        assert start == 128, start
    out = f"""; Fused decode block: pre-LN -> q projection -> sliding-window GQA attention -> wo -> residual -> LN,LN -> MLP -> residual.
; One persistent launch, 256 workgroups x 9 waves (generated by a Python script from hand-written sequences).
; @launch grid=(256,1,1) block=(576,1,1) lds={LDS_SIZE}
.amdgcn_target "amdgcn-amd-amdhsa--gfx950"
.text
.globl {NAME}_kernel
.type L_front,@object
L_front:
.fill 768, 4, 0
.p2align 8
.type {NAME}_kernel,@function
{NAME}_kernel:
""" + "\n".join(body) + f"""
.p2align 7
.type L_table,@object
L_table:
""" + "\n".join(f".long {t:#x}" for t in tab) + f"""
.p2align 8
L_codeend:
.section .rodata,"a"
.p2align 6
.amdhsa_kernel {NAME}_kernel
  .amdhsa_next_free_vgpr 168
  .amdhsa_next_free_sgpr 102
  .amdhsa_accum_offset 168
  .amdhsa_group_segment_fixed_size 0
  .amdhsa_kernarg_size 104
  .amdhsa_user_sgpr_count 2
  .amdhsa_user_sgpr_kernarg_segment_ptr 1
  .amdhsa_system_sgpr_workgroup_id_x 1
  .amdhsa_float_denorm_mode_32 3
.end_amdhsa_kernel
"""
    return out
def gen(**kw):
    import subprocess, re
    lines = 100
    for _ in range(3):
        txt = gen1(lines, **kw)
        open("_g.s", "w").write(txt)
        subprocess.run(["clang", "-x", "assembler", "-target", "amdgcn-amd-amdhsa", "-mcpu=gfx950", "-c", "_g.s", "-o", "_g.o"], check=True)
        sym = subprocess.run(["llvm-objdump", "-t", "_g.o"], capture_output=True, text=True).stdout
        at = lambda n: int(re.search(r"^([0-9a-f]+) .*" + n + "$", sym, re.M).group(1), 16)
        end = at("L_codeend") - at("_kernel")
        assert at("L_end256") - at("_kernel") <= 256
        if end // 128 == lines: return txt
        lines = end // 128
    raise RuntimeError("size did not converge")
if __name__ == "__main__":
    open("k.s", "w").write(gen())
    open("ks.s", "w").write(gen(stamp=True))
```

```python
import re
def amp_end(t, K=8, base=1200, off=2000):
    t = re.sub(r"(v_readfirstlane_b32 s33, v0\n)", r"\1s_memrealtime s[64:65]\n", t, count=1)
    m = re.search(r"global_store_short v7, v40, s\[24:25\][^\n]*\n", t)
    pad = (f"s_memrealtime s[66:67]\ns_waitcnt lgkmcnt(0)\ns_sub_u32 s68, s66, s64\ns_sub_u32 s68, s68, {base}\ns_max_i32 s68, s68, 0\ns_min_u32 s68, s68, 2000\ns_mul_i32 s68, s68, {K}\ns_add_u32 s68, s68, {off}\n"
           "L_pad:\ns_memrealtime s[66:67]\ns_waitcnt lgkmcnt(0)\ns_sub_u32 s66, s66, s64\ns_cmp_lt_u32 s66, s68\ns_cbranch_scc1 L_pad\n")
    return t[:m.end()] + pad + t[m.end():]
if __name__ == "__main__":
    import genf, gen_v10, gen_v8
    out = {"f": genf.gen(), "g0": genf.gen(guess=0), "g1": genf.gen(guess=1), "v10": gen_v10.gen(), "v8": gen_v8.gen()}
    for k, v in out.items(): open(f"a_{k}.s", "w").write(amp_end(v))
```
